```python
import torch

def _softmax(x, axis=-1):
    return torch.softmax(x, dim=axis)
def _gelu(x):
    return torch.nn.functional.gelu(x, approximate="tanh")
def _silu(x):
    return torch.nn.functional.silu(x)
def _sigmoid(x):
    return torch.sigmoid(x)
def _layernorm(x, axis=-1, eps=1e-5):
    m = x.mean(dim=axis, keepdim=True)
    v = x.var(dim=axis, keepdim=True, unbiased=False)
    return (x - m) / torch.sqrt(v + eps)
def _scatter_add(tgt, idx, src, axis=0):
    return tgt.clone().index_add_(axis, idx, src)
def _segment_sum(src, seg, n):
    out = torch.zeros((n,) + src.shape[1:], dtype=src.dtype)
    return out.index_add_(0, seg, src)
def _pad(x, pw):
    flat = tuple(v for pair in reversed(pw) for v in pair)
    return torch.nn.functional.pad(x, flat)

kernel_name = 'gated_mix__compressed_kv_cla__dense_activation_squared_relu__decode'

def setup_inputs():

    _w = (lambda a: (lambda t: t.to(torch.bfloat16) if t.is_floating_point() else t)(torch.as_tensor(a)))
    def _A_setup():
        B, H, Sq, Sk, D, M = 2, 32, 1, 8192, 128, 576
        Dc = 4 * D
        return {
            "x": _w((lambda *s: torch.randn(*s, dtype=torch.bfloat16) * 0.05)(B, Sq, M)),
            "c_kv": _w((lambda *s: torch.randn(*s, dtype=torch.bfloat16) * 1.6)(B, Sk, Dc)),
            "w_q": _w((lambda *s: torch.randn(*s, dtype=torch.bfloat16) * 6.4)(M, H, D) * (M ** -0.5)),
            "w_uk": _w((lambda *s: torch.randn(*s, dtype=torch.bfloat16) * 6.4)(Dc, H, D) * (Dc ** -0.5)),
            "w_uv": _w((lambda *s: torch.randn(*s, dtype=torch.bfloat16) * 1.6)(Dc, H, D) * (Dc ** -0.5)),
            "w_o": _w((lambda *s: torch.randn(*s, dtype=torch.bfloat16) * 1.6)(H, D, M) * ((H * D) ** -0.5)),
        }
    _A_in = _A_setup()

    def _B_setup():
        B, S, D, F = 2, 1, 576, 4608
        return {
            "x": _w((lambda *s: torch.randn(*s, dtype=torch.bfloat16) * 0.05)(B, S, D)),
            "w1": _w((lambda *s: torch.randn(*s, dtype=torch.bfloat16) * 0.4)(D, F)),
            "b1": _w((lambda *s: torch.randn(*s, dtype=torch.bfloat16) * 0.2)(F)),
            "w2": _w((lambda *s: torch.randn(*s, dtype=torch.bfloat16) * 0.2)(F, D)),
            "b2": _w((lambda *s: torch.randn(*s, dtype=torch.bfloat16) * 0.2)(D)),
        }
    _B_in = _B_setup()

    return {
        "A_x": _A_in["x"],
        "A_c_kv": _A_in["c_kv"],
        "A_w_q": _A_in["w_q"],
        "A_w_uk": _A_in["w_uk"],
        "A_w_uv": _A_in["w_uv"],
        "A_w_o": _A_in["w_o"],
        "B_x": _B_in["x"],
        "B_w1": _B_in["w1"],
        "B_b1": _B_in["b1"],
        "B_w2": _B_in["w2"],
        "B_b2": _B_in["b2"],
        "gate_w": _w((lambda *s: torch.randn(*s, dtype=torch.bfloat16) * 0.05)(576) * 16.0),
    }

def reference(A_x, A_c_kv, A_w_q, A_w_uk, A_w_uv, A_w_o, B_x, B_w1, B_b1, B_w2, B_b2, gate_w):
    def _A_ref(x, c_kv, w_q, w_uk, w_uv, w_o):
        B, Sq, M = x.shape[0], x.shape[1], x.shape[2]
        Sk = c_kv.shape[1]
        H, D = w_q.shape[1], w_q.shape[2]
        q = torch.einsum("bqm,mhd->bhqd", x, w_q)
        k = torch.einsum("bkc,chd->bhkd", c_kv, w_uk)
        v = torch.einsum("bkc,chd->bhkd", c_kv, w_uv)
        scores = torch.einsum("bhqd,bhkd->bhqk", q, k) * (D ** -0.5)
        off = Sk - Sq
        qi = torch.arange(Sq)[:, None]
        kj = torch.arange(Sk)[None, :]
        cmask = kj <= (qi + off)
        scores = torch.where(cmask[None, None], scores, -1e9)
        p = _softmax(scores, axis=-1)
        ctx = torch.einsum("bhqk,bhkd->bhqd", p, v)
        return torch.einsum("bhqd,hdm->bqm", ctx, w_o)

    def _B_ref(x, w1, b1, w2, b2):
        h = torch.einsum("bsd,df->bsf", x, w1) + b1
        zero = torch.zeros_like(h)
        r = torch.where(h > zero, h, zero)
        h = r * r
        out = torch.einsum("bsf,fd->bsd", h, w2) + b2
        return out

    x = A_x
    g = _sigmoid((x * gate_w).sum(-1, keepdims=True))
    a = _A_ref(x, A_c_kv, A_w_q, A_w_uk, A_w_uv, A_w_o)
    b = _B_ref(x, B_w1, B_b1, B_w2, B_b2)
    return g * a + (1 - g) * b
```

```python
import sys

NAME = "gated_mix__compressed_kv_cla__dense_activation_squared_relu__decode"

WS_QA = 0
WS_ML = 0x80000
WS_FFNP = 0x100000
WS_AP = 0x200000
WS_OP = 0x1000000

SCALE_LOG2 = (128 ** -0.5) * 1.4426950408889634

import struct
def f32bits(x):
    return struct.unpack("<I", struct.pack("<f", x))[0]


class A:
    def __init__(self):
        self.l = []
    def __call__(self, s):
        for line in s.strip("\n").split("\n"):
            self.l.append("    " + line.strip())
    def label(self, s):
        self.l.append(s + ":")
    def raw(self, s):
        self.l.append(s)
    def text(self):
        return "\n".join(self.l) + "\n"


def kernel_begin(a, name):
    a.raw(".text")
    a.raw(f".globl {name}")
    a.raw(".p2align 8")
    a.raw(f".type {name},@function")
    a.label(name)


def kernel_desc(a, name, vgpr, sgpr):
    acc = (vgpr + 3) // 4 * 4
    a.raw('.section .rodata,"a"')
    a.raw(".p2align 6")
    a.raw(f".amdhsa_kernel {name}")
    a.raw(f"  .amdhsa_next_free_vgpr {vgpr}")
    a.raw(f"  .amdhsa_next_free_sgpr {sgpr}")
    a.raw(f"  .amdhsa_accum_offset {acc}")
    a.raw("  .amdhsa_group_segment_fixed_size 0")
    a.raw("  .amdhsa_kernarg_size 120")
    a.raw("  .amdhsa_user_sgpr_count 2")
    a.raw("  .amdhsa_user_sgpr_kernarg_segment_ptr 1")
    a.raw("  .amdhsa_system_sgpr_workgroup_id_x 1")
    a.raw(".end_amdhsa_kernel")


def srd(a, s, size):
    a(f"s_mov_b32 s{s+2}, {size}")
    a(f"s_mov_b32 s{s+3}, 0x00020000")


def dot_rows(a, W, nrows, X, acc, tmp, sLO, sHI):
    for p in range(nrows // 2):
        for q in range(4):
            r0 = W + 4 * (2 * p) + q
            r1 = W + 4 * (2 * p + 1) + q
            a(f"v_perm_b32 v{tmp}, v{r1}, v{r0}, s{sLO}")
            a(f"v_perm_b32 v{tmp+1}, v{r1}, v{r0}, s{sHI}")
            for b in range(len(X)):
                a(f"v_dot2c_f32_bf16 v{acc[b]+2*q}, v{tmp}, v{X[b]+p}")
                a(f"v_dot2c_f32_bf16 v{acc[b]+2*q+1}, v{tmp+1}, v{X[b]+p}")


def sum_tree(a, regs):
    regs = list(regs)
    while len(regs) > 1:
        nxt = []
        for i in range(0, len(regs) - 1, 2):
            a(f"v_add_f32 v{regs[i]}, v{regs[i]}, v{regs[i+1]}")
            nxt.append(regs[i])
        if len(regs) % 2:
            nxt.append(regs[-1])
        regs = nxt


def round_bf16(a, v, ):
    a(f"v_cvt_pk_bf16_f32 v{v}, v{v}, v{v}")
    a(f"v_lshlrev_b32 v{v}, 16, v{v}")


def wave_reduce(a, op, v, t):
    a("s_nop 1")
    a(f"{op}_dpp v{v}, v{v}, v{v} quad_perm:[1,0,3,2] row_mask:0xf bank_mask:0xf")
    a("s_nop 1")
    a(f"{op}_dpp v{v}, v{v}, v{v} quad_perm:[2,3,0,1] row_mask:0xf bank_mask:0xf")
    a("s_nop 1")
    a(f"{op}_dpp v{v}, v{v}, v{v} row_half_mirror row_mask:0xf bank_mask:0xf")
    a("s_nop 1")
    a(f"{op}_dpp v{v}, v{v}, v{v} row_mirror row_mask:0xf bank_mask:0xf")
    xrow_reduce(a, op, v, t)


def xrow_reduce(a, op, v, t):
    a(f"v_mov_b32 v{t}, v{v}")
    a("s_nop 1")
    a(f"v_permlane16_swap_b32 v{v}, v{t}")
    a("s_nop 1")
    a(f"{op} v{v}, v{v}, v{t}")
    a(f"v_mov_b32 v{t}, v{v}")
    a("s_nop 1")
    a(f"v_permlane32_swap_b32 v{v}, v{t}")
    a("s_nop 1")
    a(f"{op} v{v}, v{v}, v{t}")


def gen_k1(a):
    name = "k1_kernel"
    kernel_begin(a, name)
    a("""
    s_cmp_ge_u32 s2, 328
    s_cbranch_scc1 k1_end
    s_load_dwordx2 s[4:5], s[0:1], 0
    s_load_dwordx2 s[8:9], s[0:1], 16
    s_load_dwordx2 s[12:13], s[0:1], 24
    s_load_dwordx2 s[16:17], s[0:1], 112
    s_load_dwordx2 s[20:21], s[0:1], 56
    s_load_dwordx2 s[24:25], s[0:1], 64
    s_load_dwordx2 s[28:29], s[0:1], 72
    """)
    srd(a, 4, 2304); srd(a, 8, 4718592); srd(a, 12, 4194304); srd(a, 16, 268435456)
    srd(a, 20, 5308416); srd(a, 24, 9216); srd(a, 28, 5308416)
    a("""
    s_mov_b32 s40, 0x05040100
    s_mov_b32 s41, 0x07060302
    v_readfirstlane_b32 s42, v0
    s_lshr_b32 s42, s42, 6
    s_waitcnt lgkmcnt(0)
    s_cmp_ge_u32 s2, 256
    s_cbranch_scc1 k1_ffn
    """)
    a("""
    s_and_b32 s32, s2, 7
    s_lshr_b32 s33, s2, 3
    s_and_b32 s33, s33, 3
    s_lshl_b32 s33, s33, 3
    s_add_u32 s32, s32, s33
    s_lshr_b32 s33, s2, 5
    v_lshrrev_b32 v1, 4, v0
    v_and_b32 v2, 15, v0
    v_lshlrev_b32 v4, 5, v1
    buffer_load_dwordx4 v[80:83], v4, s[4:7], 0 offen
    buffer_load_dwordx4 v[84:87], v4, s[4:7], 0 offen offset:16
    buffer_load_dwordx4 v[88:91], v4, s[4:7], 0 offen offset:1152
    buffer_load_dwordx4 v[92:95], v4, s[4:7], 0 offen offset:1168
    v_lshlrev_b32 v3, 17, v1
    v_lshl_add_u32 v3, v2, 4, v3
    s_lshl_b32 s34, s32, 8
    """)
    for i in range(16):
        a(f"buffer_load_dwordx4 v[{16+4*i}:{19+4*i}], v3, s[8:11], s34 offen")
        if i < 15:
            a("s_add_u32 s34, s34, 8192")
    a("""
    s_cmp_ge_u32 s42, 4
    s_cbranch_scc1 k1_q_noA
    v_and_b32 v5, 63, v0
    v_lshrrev_b32 v6, 4, v5
    v_lshlrev_b32 v7, 13, v2
    v_lshl_add_u32 v7, v6, 4, v7
    s_lshl_b32 s35, s33, 6
    s_lshl_b32 s36, s42, 4
    s_add_u32 s35, s35, s36
    s_lshl_b32 s35, s35, 13
    s_lshl_b32 s36, s32, 8
    s_add_u32 s35, s35, s36
    buffer_load_dwordx4 v[96:99], v7, s[12:15], s35 offen
    buffer_load_dwordx4 v[100:103], v7, s[12:15], s35 offen offset:64
    buffer_load_dwordx4 v[104:107], v7, s[12:15], s35 offen offset:128
    buffer_load_dwordx4 v[108:111], v7, s[12:15], s35 offen offset:192
    """)
    a.label("k1_q_noA")
    for i in range(16):
        a(f"v_mov_b32 v{112+i}, 0")
    a("s_waitcnt vmcnt(0)")
    dot_rows(a, 16, 16, [80, 88], [112, 120], 8, 40, 41)
    a("s_nop 3")
    a("""
    v_lshlrev_b32 v4, 10, v1
    v_lshl_add_u32 v4, v2, 5, v4
    ds_write_b128 v4, v[112:115]
    ds_write_b128 v4, v[116:119] offset:16
    ds_write_b128 v4, v[120:123] offset:512
    ds_write_b128 v4, v[124:127] offset:528
    s_waitcnt lgkmcnt(0)
    s_barrier
    s_cmp_ge_u32 s42, 4
    s_cbranch_scc1 k1_q_skip_red
    v_lshlrev_b32 v4, 2, v0
    """)
    for g in range(36):
        a(f"ds_read_b32 v{16+g}, v4 offset:{g*1024}")
    a("s_waitcnt lgkmcnt(0)")
    sum_tree(a, range(16, 52))
    a("""
    v_cvt_pk_bf16_f32 v16, v16, v16
    v_lshlrev_b32 v4, 1, v0
    ds_write_b16 v4, v16 offset:36864
    s_waitcnt lgkmcnt(0)
    """)
    a.label("k1_q_skip_red")
    a("""
    s_barrier
    s_cmp_ge_u32 s42, 4
    s_cbranch_scc1 k1_end
    """)
    for i in range(16):
        a(f"v_mov_b32 v{16+i}, 0")
    for i in range(4):
        a(f"v_mov_b32 v{32+i}, 0")
    a("""
    v_lshlrev_b32 v8, 8, v2
    v_lshl_add_u32 v8, v6, 4, v8
    v_cmp_gt_u32 vcc, 2, v2
    s_and_saveexec_b64 s[44:45], vcc
    ds_read_b128 v[16:19], v8 offset:36864
    ds_read_b128 v[20:23], v8 offset:36928
    ds_read_b128 v[24:27], v8 offset:36992
    ds_read_b128 v[28:31], v8 offset:37056
    s_mov_b64 exec, s[44:45]
    s_waitcnt lgkmcnt(0)
    s_nop 4
    v_mfma_f32_16x16x32_bf16 v[32:35], v[96:99], v[16:19], v[32:35]
    v_mfma_f32_16x16x32_bf16 v[32:35], v[100:103], v[20:23], v[32:35]
    v_mfma_f32_16x16x32_bf16 v[32:35], v[104:107], v[24:27], v[32:35]
    v_mfma_f32_16x16x32_bf16 v[32:35], v[108:111], v[28:31], v[32:35]
    s_nop 7
    s_nop 1
    v_cvt_pk_bf16_f32 v36, v32, v33
    v_cvt_pk_bf16_f32 v37, v34, v35
    """)
    a("""
    s_lshl_b32 s35, s33, 1
    s_lshr_b32 s36, s42, 1
    s_add_u32 s35, s35, s36
    s_lshl_b32 s35, s35, 1
    s_lshr_b32 s36, s32, 4
    s_add_u32 s35, s35, s36
    s_lshl_b32 s35, s35, 6
    s_and_b32 s36, s42, 1
    s_lshl_b32 s36, s36, 5
    s_add_u32 s35, s35, s36
    s_and_b32 s36, s32, 15
    s_add_u32 s35, s35, s36
    s_lshl_b32 s35, s35, 4
    v_lshlrev_b32 v9, 15, v2
    v_lshrrev_b32 v10, 1, v6
    v_lshl_add_u32 v9, v10, 8, v9
    v_and_b32 v10, 1, v6
    v_lshl_add_u32 v9, v10, 3, v9
    v_cmp_gt_u32 vcc, 2, v2
    s_and_saveexec_b64 s[44:45], vcc
    buffer_store_dwordx2 v[36:37], v9, s[16:19], s35 offen
    s_mov_b64 exec, s[44:45]
    s_endpgm
    """)
    a.label("k1_ffn")
    a("""
    s_sub_u32 s32, s2, 256
    v_lshrrev_b32 v1, 3, v0
    v_and_b32 v2, 7, v0
    v_lshlrev_b32 v4, 4, v1
    buffer_load_dwordx4 v[80:83], v4, s[4:7], 0 offen
    buffer_load_dwordx4 v[88:91], v4, s[4:7], 0 offen offset:1152
    v_mov_b32 v5, 73728
    v_mul_lo_u32 v3, v1, v5
    v_lshl_add_u32 v3, v2, 4, v3
    s_lshl_b32 s34, s32, 7
    """)
    for i in range(8):
        a(f"buffer_load_dwordx4 v[{16+4*i}:{19+4*i}], v3, s[20:23], s34 offen")
        if i < 7:
            a("s_add_u32 s34, s34, 9216")
    a("""
    v_mul_u32_u24 v5, 911, v0
    v_lshrrev_b32 v5, 16, v5
    v_mul_u32_u24 v6, 72, v5
    v_sub_u32 v6, v0, v6
    v_mul_u32_u24 v7, 9216, v5
    v_lshl_add_u32 v7, v6, 4, v7
    s_mul_i32 s34, s32, 73728
    """)
    for u in range(8):
        if u == 4:
            a("s_add_u32 s34, s34, 4608")
        a(f"buffer_load_dwordx4 v[{48+4*u}:{51+4*u}], v7, s[28:31], s34 offen offset:{(u%4)*1152}")
    a("""
    v_and_b32 v9, 63, v0
    v_lshlrev_b32 v9, 1, v9
    s_lshl_b32 s34, s32, 7
    buffer_load_ushort v10, v9, s[24:27], s34 offen
    """)
    for i in range(16):
        a(f"v_mov_b32 v{112+i}, 0")
    a("s_waitcnt vmcnt(9)")
    dot_rows(a, 16, 8, [80, 88], [112, 120], 12, 40, 41)
    a("s_nop 3")
    a("""
    v_lshlrev_b32 v4, 9, v1
    v_lshl_add_u32 v4, v2, 5, v4
    ds_write_b128 v4, v[112:115]
    ds_write_b128 v4, v[116:119] offset:16
    ds_write_b128 v4, v[120:123] offset:256
    ds_write_b128 v4, v[124:127] offset:272
    s_waitcnt lgkmcnt(0)
    s_barrier
    s_cmp_ge_u32 s42, 2
    s_cbranch_scc1 k1_f_skip_red
    v_lshlrev_b32 v4, 2, v0
    """)
    regs = list(range(16, 48)) + list(range(80, 120))
    for g in range(72):
        a(f"ds_read_b32 v{regs[g]}, v4 offset:{g*512}")
    a("s_waitcnt lgkmcnt(0)")
    sum_tree(a, regs)
    a("s_waitcnt vmcnt(0)")
    round_bf16(a, 16)
    a("""
    v_lshlrev_b32 v10, 16, v10
    v_add_f32 v16, v16, v10
    """)
    round_bf16(a, 16)
    a("""
    v_max_f32 v16, 0, v16
    v_mul_f32 v16, v16, v16
    v_cvt_pk_bf16_f32 v16, v16, v16
    v_lshlrev_b32 v4, 1, v0
    ds_write_b16 v4, v16 offset:36864
    s_waitcnt lgkmcnt(0)
    """)
    a.label("k1_f_skip_red")
    a("""
    s_barrier
    v_lshlrev_b32 v4, 4, v5
    ds_read_b128 v[80:83], v4 offset:36864
    ds_read_b128 v[88:91], v4 offset:36992
    """)
    for i in range(16):
        a(f"v_mov_b32 v{112+i}, 0")
    a("s_waitcnt vmcnt(0) lgkmcnt(0)")
    dot_rows(a, 48, 8, [80, 88], [112, 120], 12, 40, 41)
    a("s_nop 3")
    a("""
    v_mul_u32_u24 v4, 4608, v5
    v_lshl_add_u32 v4, v6, 5, v4
    ds_write_b128 v4, v[112:115]
    ds_write_b128 v4, v[116:119] offset:16
    ds_write_b128 v4, v[120:123] offset:2304
    ds_write_b128 v4, v[124:127] offset:2320
    s_waitcnt lgkmcnt(0)
    s_barrier
    v_lshlrev_b32 v4, 2, v0
    """)
    for b in range(2):
        for r in range(8):
            a(f"ds_read_b32 v{16+b*8+r}, v4 offset:{r*4608+b*2304}")
    a("s_waitcnt lgkmcnt(0)")
    sum_tree(a, range(16, 24))
    sum_tree(a, range(24, 32))
    a(f"""
    s_mul_i32 s34, s32, 4608
    s_add_u32 s34, s34, {WS_FFNP}
    buffer_store_dword v16, v4, s[16:19], s34 offen
    buffer_store_dword v24, v4, s[16:19], s34 offen offset:2304
    """)
    a.label("k1_end")
    a("s_endpgm")
    return name, 128, 48


ROWB = 1040
L_P = 0
L_MX = L_P + 4096
L_LS = L_MX + 512
L_C = L_LS + 512
K2_LDS = L_C + 64 * ROWB


def gen_k2(a):
    name = "k2_kernel"
    kernel_begin(a, name)
    a("""
    s_cmp_ge_u32 s2, 256
    s_cbranch_scc1 k2_end
    s_load_dwordx2 s[4:5], s[0:1], 8
    s_load_dwordx2 s[8:9], s[0:1], 112
    """)
    srd(a, 4, 16777216); srd(a, 8, 268435456)
    a("""
    v_readfirstlane_b32 s12, v0
    s_lshr_b32 s12, s12, 6
    v_and_b32 v1, 63, v0
    v_lshlrev_b32 v2, 4, v1
    s_lshr_b32 s13, s2, 7
    s_and_b32 s14, s2, 127
    s_lshl_b32 s15, s2, 16
    s_lshl_b32 s16, s12, 14
    s_add_u32 s15, s15, s16
    s_mul_i32 s16, s12, 16640
    s_add_u32 s16, s16, 5120
    s_waitcnt lgkmcnt(0)
    """)
    for r in range(16):
        a(f"s_mov_b32 m0, s16")
        a(f"s_add_u32 s16, s16, {ROWB}")
        a(f"buffer_load_dwordx4 v2, s[4:7], s15 offen lds")
        a(f"s_add_u32 s15, s15, 1024")
    a(f"s_lshl_b32 s17, s13, 15")
    for i in range(32):
        if i and i % 4 == 0:
            a("s_add_u32 s17, s17, 4096")
        a(f"buffer_load_dwordx4 v[{64+4*i}:{67+4*i}], v2, s[8:11], s17 offen offset:{(i%4)*1024}")
    a(f"""
    v_and_b32 v3, 15, v1
    v_lshrrev_b32 v4, 4, v1
    s_lshl_b32 s18, s12, 4
    v_add_u32 v5, s18, v3
    v_mul_u32_u24 v5, {ROWB}, v5
    v_lshl_add_u32 v5, v4, 4, v5
    v_add_u32 v5, 5120, v5
    """)
    for i in range(8):
        a(f"v_mov_b32 v{192+i}, 0")
    a("s_waitcnt vmcnt(0)")
    for ks in range(16):
        a(f"ds_read_b128 v[{4*ks+200}:{4*ks+203}], v5 offset:{ks*64}") if ks < 8 else None
    for half in range(2):
        if half == 1:
            for ks in range(8, 16):
                a(f"ds_read_b128 v[{4*(ks-8)+200}:{4*(ks-8)+203}], v5 offset:{ks*64}")
        for k8 in range(8):
            ks = half * 8 + k8
            a(f"s_waitcnt lgkmcnt({7-k8})")
            A_ = 200 + 4 * k8
            B0 = 64 + 4 * (2 * ks)
            B1 = 64 + 4 * (2 * ks + 1)
            a(f"v_mfma_f32_16x16x32_bf16 v[192:195], v[{A_}:{A_+3}], v[{B0}:{B0+3}], v[192:195]")
            a(f"v_mfma_f32_16x16x32_bf16 v[196:199], v[{A_}:{A_+3}], v[{B1}:{B1+3}], v[196:199]")
        if half == 0:
            a("s_nop 1")
    a("s_nop 7")
    a("s_nop 1")
    a(f"s_mov_b32 s19, {f32bits(SCALE_LOG2)}")
    for i in range(8):
        a(f"v_mul_f32 v{192+i}, s19, v{192+i}")
    a("""
    v_max3_f32 v6, v192, v193, v194
    v_max_f32 v6, v6, v195
    v_max3_f32 v7, v196, v197, v198
    v_max_f32 v7, v7, v199
    """)
    xrow_reduce(a, "v_max_f32", 6, 8)
    xrow_reduce(a, "v_max_f32", 7, 8)
    a(f"""
    v_lshlrev_b32 v9, 4, v3
    s_lshl_b32 s18, s12, 2
    v_add_u32 v10, s18, v9
    ds_write_b32 v10, v6 offset:{L_MX}
    ds_write_b32 v10, v7 offset:{L_MX+256}
    s_waitcnt lgkmcnt(0)
    s_barrier
    ds_read_b128 v[12:15], v9 offset:{L_MX}
    ds_read_b128 v[16:19], v9 offset:{L_MX+256}
    s_waitcnt lgkmcnt(0)
    v_max3_f32 v6, v12, v13, v14
    v_max_f32 v6, v6, v15
    v_max3_f32 v7, v16, v17, v18
    v_max_f32 v7, v7, v19
    """)
    for i in range(4):
        a(f"v_sub_f32 v{192+i}, v{192+i}, v6")
        a(f"v_sub_f32 v{196+i}, v{196+i}, v7")
    for i in range(8):
        a(f"v_exp_f32 v{192+i}, v{192+i}")
    a("s_nop 0")
    a("""
    v_add_f32 v12, v192, v193
    v_add_f32 v13, v194, v195
    v_add_f32 v12, v12, v13
    v_add_f32 v14, v196, v197
    v_add_f32 v13, v198, v199
    v_add_f32 v14, v14, v13
    v_cvt_pk_bf16_f32 v16, v192, v193
    v_cvt_pk_bf16_f32 v17, v194, v195
    v_cvt_pk_bf16_f32 v18, v196, v197
    v_cvt_pk_bf16_f32 v19, v198, v199
    """)
    a(f"""
    s_lshl_b32 s18, s12, 10
    v_lshl_add_u32 v11, v4, 1, v9
    v_add_u32 v11, s18, v11
    ds_write_b16 v11, v16 offset:{L_P}
    ds_write_b16_d16_hi v11, v16 offset:{L_P+8}
    ds_write_b16 v11, v17 offset:{L_P+512}
    ds_write_b16_d16_hi v11, v17 offset:{L_P+512+8}
    ds_write_b16 v11, v18 offset:{L_P+256}
    ds_write_b16_d16_hi v11, v18 offset:{L_P+256+8}
    ds_write_b16 v11, v19 offset:{L_P+256+512}
    ds_write_b16_d16_hi v11, v19 offset:{L_P+256+512+8}
    """)
    xrow_reduce(a, "v_add_f32", 12, 8)
    xrow_reduce(a, "v_add_f32", 14, 8)
    a(f"""
    ds_write_b32 v10, v12 offset:{L_LS}
    ds_write_b32 v10, v14 offset:{L_LS+256}
    """)
    for i in range(64):
        a(f"v_mov_b32 v{64+i}, 0")
    a(f"""
    v_lshrrev_b32 v20, 2, v3
    v_lshlrev_b32 v20, 2, v20
    v_lshrrev_b32 v21, 5, v1
    v_lshl_add_u32 v20, v21, 1, v20
    v_mul_u32_u24 v20, {ROWB}, v20
    v_and_b32 v21, 1, v4
    v_lshl_add_u32 v20, v21, 5, v20
    v_and_b32 v21, 3, v1
    v_lshl_add_u32 v20, v21, 3, v20
    s_lshl_b32 s18, s12, 8
    s_add_u32 s18, s18, 5120
    v_add_u32 v20, s18, v20
    s_waitcnt lgkmcnt(0)
    s_barrier
    """)
    for ks in range(4):
        a(f"ds_read_b128 v[{128+4*ks}:{131+4*ks}], v2 offset:{L_P+ks*1024}")
    def breads(ks):
        base = 144 + 16 * (ks & 1)
        for nt in range(4):
            for t in range(2):
                off = (ks * 16 + t) * ROWB + nt * 64
                a(f"ds_read_b64_tr_b16 v[{base+4*nt+2*t}:{base+4*nt+2*t+1}], v20 offset:{off}")
    breads(0)
    for ks in range(4):
        if ks < 3:
            breads(ks + 1)
            a("s_waitcnt lgkmcnt(8)")
        else:
            a("s_waitcnt lgkmcnt(0)")
        base = 144 + 16 * (ks & 1)
        for nt in range(4):
            a(f"v_mfma_f32_32x32x16_bf16 v[{64+16*nt}:{79+16*nt}], v[{128+4*ks}:{131+4*ks}], v[{base+4*nt}:{base+4*nt+3}], v[{64+16*nt}:{79+16*nt}]")
        if ks < 2:
            a("s_nop 3")
    a(f"""
    s_cmp_lg_u32 s12, 0
    s_cbranch_scc1 k2_noml
    v_lshlrev_b32 v22, 4, v1
    v_cmp_gt_u32 vcc, 32, v1
    s_and_saveexec_b64 s[20:21], vcc
    ds_read_b128 v[24:27], v22 offset:{L_MX}
    ds_read_b128 v[28:31], v22 offset:{L_LS}
    s_waitcnt lgkmcnt(0)
    v_max3_f32 v24, v24, v25, v26
    v_max_f32 v24, v24, v27
    v_add_f32 v28, v28, v29
    v_add_f32 v30, v30, v31
    v_add_f32 v25, v28, v30
    v_lshlrev_b32 v22, 10, v1
    s_lshl_b32 s18, s13, 15
    s_lshl_b32 s22, s14, 3
    s_add_u32 s18, s18, s22
    s_add_u32 s18, s18, {WS_ML}
    buffer_store_dwordx2 v[24:25], v22, s[8:11], s18 offen
    s_mov_b64 exec, s[20:21]
    """)
    a.label("k2_noml")
    a(f"""
    v_lshrrev_b32 v22, 5, v1
    v_lshlrev_b32 v22, 20, v22
    v_and_b32 v23, 31, v1
    v_lshl_add_u32 v22, v23, 2, v22
    s_lshl_b32 s18, s12, 9
    v_add_u32 v22, s18, v22
    s_lshl_b32 s18, s13, 23
    s_lshl_b32 s22, s14, 11
    s_add_u32 s18, s18, s22
    s_add_u32 s18, s18, {WS_OP}
    s_nop 7
    s_nop 7
    """)
    for r in range(16):
        hd = (r >> 2) * 8 + (r & 3)
        a(f"s_add_u32 s22, s18, {hd*262144}")
        for nt in range(4):
            a(f"buffer_store_dword v{64+16*nt+r}, v22, s[8:11], s22 offen offset:{nt*128}")
    a.label("k2_end")
    a("s_endpgm")
    return name, 232, 32


L3_WGT = 0
L3_P1 = 1024
L3_CC = 9216
L3_P2 = 9728
L3_PC = 42496
L3_P3 = 43008
K3_LDS = L3_P3 + 36864


def gen_k3(a):
    name = "k3_kernel"
    kernel_begin(a, name)
    a("""
    s_cmp_ge_u32 s2, 256
    s_cbranch_scc1 k3_end
    s_load_dwordx2 s[4:5], s[0:1], 32
    s_load_dwordx2 s[8:9], s[0:1], 40
    s_load_dwordx2 s[12:13], s[0:1], 112
    """)
    srd(a, 4, 4194304); srd(a, 8, 4718592); srd(a, 12, 268435456)
    a("""
    s_mov_b32 s40, 0x05040100
    s_mov_b32 s41, 0x07060302
    v_readfirstlane_b32 s42, v0
    s_lshr_b32 s42, s42, 6
    s_and_b32 s32, s2, 7
    s_lshr_b32 s33, s2, 3
    s_and_b32 s33, s33, 3
    s_lshl_b32 s33, s33, 3
    s_add_u32 s32, s32, s33
    s_lshr_b32 s33, s2, 5
    v_and_b32 v1, 63, v0
    v_lshrrev_b32 v2, 4, v0
    v_and_b32 v3, 15, v0
    s_waitcnt lgkmcnt(0)
    """)
    a(f"""
    s_cmp_ge_u32 s42, 2
    s_cbranch_scc1 k3_noml
    v_lshlrev_b32 v4, 3, v1
    s_lshl_b32 s34, s42, 5
    s_add_u32 s34, s34, s32
    s_lshl_b32 s34, s34, 10
    s_add_u32 s34, s34, {WS_ML}
    buffer_load_dwordx2 v[8:9], v4, s[12:15], s34 offen
    buffer_load_dwordx2 v[10:11], v4, s[12:15], s34 offen offset:512
    """)
    a.label("k3_noml")
    a(f"""
    s_cmp_ge_u32 s42, 8
    s_cbranch_scc1 k3_nobc
    v_lshrrev_b32 v4, 4, v2
    v_lshlrev_b32 v4, 23, v4
    v_and_b32 v5, 15, v2
    v_lshl_add_u32 v4, v5, 14, v4
    v_lshl_add_u32 v4, v3, 4, v4
    s_lshl_b32 s34, s32, 18
    s_lshl_b32 s35, s33, 8
    s_add_u32 s34, s34, s35
    s_add_u32 s34, s34, {WS_OP}
    """)
    for u in range(8):
        if u and u % 2 == 0:
            a("s_add_u32 s34, s34, 4096")
        a(f"buffer_load_dwordx4 v[{16+4*u}:{19+4*u}], v4, s[12:15], s34 offen offset:{(u%2)*2048}")
    a("""
    v_lshlrev_b32 v4, 14, v2
    v_lshl_add_u32 v4, v3, 4, v4
    s_lshl_b32 s34, s33, 19
    s_lshl_b32 s35, s32, 8
    s_add_u32 s34, s34, s35
    buffer_load_dwordx4 v[48:51], v4, s[4:7], s34 offen
    s_add_u32 s34, s34, 8192
    buffer_load_dwordx4 v[52:55], v4, s[4:7], s34 offen
    """)
    a.label("k3_nobc")
    a("""
    v_mul_u32_u24 v6, 911, v0
    v_lshrrev_b32 v6, 16, v6
    v_mul_u32_u24 v7, 72, v6
    v_sub_u32 v7, v0, v7
    v_mul_u32_u24 v4, 18432, v6
    v_lshl_add_u32 v4, v7, 4, v4
    s_mul_i32 s34, s32, 147456
    """)
    for u in range(16):
        if u and u % 4 == 0:
            a("s_add_u32 s34, s34, 4608")
        a(f"buffer_load_dwordx4 v[{64+4*u}:{67+4*u}], v4, s[8:11], s34 offen offset:{(u%4)*1152}")
    a("""
    s_cmp_ge_u32 s42, 2
    s_cbranch_scc1 k3_nostats
    s_waitcnt vmcnt(26)
    v_max_f32 v12, v8, v10
    """)
    wave_reduce(a, "v_max_f32", 12, 13)
    a("""
    v_sub_f32 v8, v8, v12
    v_sub_f32 v10, v10, v12
    v_exp_f32 v8, v8
    v_exp_f32 v10, v10
    s_nop 0
    v_mul_f32 v12, v8, v9
    v_fmac_f32 v12, v10, v11
    """)
    wave_reduce(a, "v_add_f32", 12, 13)
    a(f"""
    v_rcp_f32 v12, v12
    s_nop 0
    v_mul_f32 v8, v8, v12
    v_mul_f32 v10, v10, v12
    v_lshlrev_b32 v4, 2, v1
    s_lshl_b32 s34, s42, 9
    v_add_u32 v4, s34, v4
    ds_write_b32 v4, v8 offset:{L3_WGT}
    ds_write_b32 v4, v10 offset:{L3_WGT+256}
    s_waitcnt lgkmcnt(0)
    """)
    a.label("k3_nostats")
    a(f"""
    s_barrier
    s_cmp_ge_u32 s42, 8
    s_cbranch_scc1 k3_s1skip
    v_lshlrev_b32 v4, 5, v2
    ds_read_b128 v[8:11], v4 offset:{L3_WGT}
    ds_read_b128 v[12:15], v4 offset:{L3_WGT+16}
    s_waitcnt vmcnt(18) lgkmcnt(0)
    """)
    for k in range(4):
        a(f"v_mul_f32 v{56+k}, v8, v{16+k}")
    for u in range(1, 8):
        for k in range(4):
            a(f"v_fmac_f32 v{56+k}, v{8+u}, v{16+4*u+k}")
    a(f"""
    v_lshlrev_b32 v4, 8, v2
    v_lshl_add_u32 v4, v3, 4, v4
    ds_write_b128 v4, v[56:59] offset:{L3_P1}
    s_waitcnt lgkmcnt(0)
    """)
    a.label("k3_s1skip")
    a(f"""
    s_barrier
    s_cmp_ge_u32 s42, 2
    s_cbranch_scc1 k3_r1skip
    v_lshlrev_b32 v4, 2, v1
    s_lshl_b32 s34, s42, 12
    v_add_u32 v4, s34, v4
    """)
    for g in range(16):
        a(f"ds_read_b32 v{16+g}, v4 offset:{L3_P1+g*256}")
    a("s_waitcnt lgkmcnt(0)")
    sum_tree(a, range(16, 32))
    a(f"""
    v_lshlrev_b32 v4, 2, v0
    ds_write_b32 v4, v16 offset:{L3_CC}
    s_waitcnt lgkmcnt(0)
    """)
    a.label("k3_r1skip")
    a(f"""
    s_barrier
    s_cmp_ge_u32 s42, 8
    s_cbranch_scc1 k3_s2skip
    v_lshlrev_b32 v4, 3, v2
    ds_read_b64 v[8:9], v4 offset:{L3_CC}
    ds_read_b64 v[10:11], v4 offset:{L3_CC+256}
    s_waitcnt vmcnt(16)
    """)
    for u in range(2):
        for q in range(4):
            a(f"v_lshlrev_b32 v{16+8*u+2*q}, 16, v{48+4*u+q}")
            a(f"v_and_b32 v{16+8*u+2*q+1}, 0xffff0000, v{48+4*u+q}")
    a("s_waitcnt lgkmcnt(0)")
    for b in range(2):
        for k in range(8):
            a(f"v_mul_f32 v{32+8*b+k}, v{8+2*b}, v{16+k}")
            a(f"v_fmac_f32 v{32+8*b+k}, v{9+2*b}, v{24+k}")
    a(f"""
    v_lshlrev_b32 v4, 10, v2
    v_lshl_add_u32 v4, v3, 5, v4
    ds_write_b128 v4, v[32:35] offset:{L3_P2}
    ds_write_b128 v4, v[36:39] offset:{L3_P2+16}
    ds_write_b128 v4, v[40:43] offset:{L3_P2+512}
    ds_write_b128 v4, v[44:47] offset:{L3_P2+528}
    s_waitcnt lgkmcnt(0)
    """)
    a.label("k3_s2skip")
    a(f"""
    s_barrier
    s_cmp_ge_u32 s42, 4
    s_cbranch_scc1 k3_r2skip
    v_lshlrev_b32 v4, 2, v0
    """)
    for g in range(32):
        a(f"ds_read_b32 v{16+g}, v4 offset:{L3_P2+g*1024}")
    a("s_waitcnt lgkmcnt(0)")
    sum_tree(a, range(16, 48))
    a(f"""
    v_cvt_pk_bf16_f32 v16, v16, v16
    v_lshlrev_b32 v4, 1, v0
    ds_write_b16 v4, v16 offset:{L3_PC}
    s_waitcnt lgkmcnt(0)
    """)
    a.label("k3_r2skip")
    a(f"""
    s_barrier
    v_lshlrev_b32 v4, 5, v6
    ds_read_b128 v[16:19], v4 offset:{L3_PC}
    ds_read_b128 v[20:23], v4 offset:{L3_PC+16}
    ds_read_b128 v[24:27], v4 offset:{L3_PC+256}
    ds_read_b128 v[28:31], v4 offset:{L3_PC+272}
    """)
    for i in range(16):
        a(f"v_mov_b32 v{32+i}, 0")
    a("s_waitcnt vmcnt(0) lgkmcnt(0)")
    dot_rows(a, 64, 16, [16, 24], [32, 40], 12, 40, 41)
    a("s_nop 3")
    a(f"""
    v_mul_u32_u24 v4, 4608, v6
    v_lshl_add_u32 v4, v7, 5, v4
    ds_write_b128 v4, v[32:35] offset:{L3_P3}
    ds_write_b128 v4, v[36:39] offset:{L3_P3+16}
    ds_write_b128 v4, v[40:43] offset:{L3_P3+2304}
    ds_write_b128 v4, v[44:47] offset:{L3_P3+2320}
    s_waitcnt lgkmcnt(0)
    s_barrier
    v_lshlrev_b32 v4, 2, v0
    """)
    for b in range(2):
        for r in range(8):
            off = L3_P3 + r * 4608 + b * 2304
            if off <= 65535:
                a(f"ds_read_b32 v{16+b*8+r}, v4 offset:{off}")
            else:
                a(f"v_add_u32 v5, {L3_P3}, v4")
                a(f"ds_read_b32 v{16+b*8+r}, v5 offset:{off-L3_P3}")
    a("s_waitcnt lgkmcnt(0)")
    sum_tree(a, range(16, 24))
    sum_tree(a, range(24, 32))
    a(f"""
    s_mul_i32 s34, s2, 4608
    s_add_u32 s34, s34, {WS_AP}
    buffer_store_dword v16, v4, s[12:15], s34 offen
    buffer_store_dword v24, v4, s[12:15], s34 offen offset:2304
    """)
    a.label("k3_end")
    a("s_endpgm")
    return name, 128, 48


def gen_k4(a):
    name = "k4_kernel"
    kernel_begin(a, name)
    a("""
    s_cmp_ge_u32 s2, 36
    s_cbranch_scc1 k4_end
    s_load_dwordx2 s[4:5], s[0:1], 0
    s_load_dwordx2 s[8:9], s[0:1], 88
    s_load_dwordx2 s[12:13], s[0:1], 112
    s_load_dwordx2 s[16:17], s[0:1], 112
    s_load_dwordx2 s[20:21], s[0:1], 80
    s_load_dwordx2 s[24:25], s[0:1], 96
    """)
    srd(a, 4, 2304); srd(a, 8, 1152); srd(a, 12, 268435456); srd(a, 16, 72 * 4608); srd(a, 20, 1152); srd(a, 24, 2304)
    a(f"""
    v_readfirstlane_b32 s42, v0
    s_lshr_b32 s42, s42, 6
    s_cmp_ge_u32 s2, 18
    s_cselect_b32 s32, 1, 0
    s_mul_i32 s33, s32, 18
    s_sub_u32 s33, s2, s33
    v_and_b32 v1, 63, v0
    v_lshrrev_b32 v2, 3, v0
    v_and_b32 v3, 7, v0
    v_mul_u32_u24 v4, 4608, v2
    v_lshl_add_u32 v4, v3, 4, v4
    s_mul_i32 s34, s32, 2304
    s_lshl_b32 s35, s33, 7
    s_add_u32 s34, s34, s35
    s_add_u32 s35, s34, {WS_AP}
    s_waitcnt lgkmcnt(0)
    s_add_u32 s16, s16, {WS_FFNP}
    s_addc_u32 s17, s17, 0
    """)
    for u in range(8):
        a(f"buffer_load_dwordx4 v[{16+4*u}:{19+4*u}], v4, s[12:15], s35 offen")
        a(f"s_add_u32 s35, s35, {32*4608}")
    for u in range(3):
        a(f"buffer_load_dwordx4 v[{48+4*u}:{51+4*u}], v4, s[16:19], s34 offen")
        a(f"s_add_u32 s34, s34, {32*4608}")
    a("""
    s_cmp_lg_u32 s42, 1
    s_cbranch_scc1 k4_nogate
    v_mov_b32 v60, 0
    v_lshlrev_b32 v5, 5, v1
    s_mul_i32 s36, s32, 1152
    v_cmp_gt_u32 vcc, 36, v1
    s_and_saveexec_b64 s[44:45], vcc
    buffer_load_dwordx4 v[64:67], v5, s[4:7], s36 offen
    buffer_load_dwordx4 v[68:71], v5, s[4:7], s36 offen offset:16
    buffer_load_dwordx4 v[72:75], v5, s[8:11], 0 offen
    buffer_load_dwordx4 v[76:79], v5, s[8:11], 0 offen offset:16
    s_waitcnt vmcnt(0)
    """)
    for q in range(8):
        a(f"v_lshlrev_b32 v61, 16, v{64+q}")
        a(f"v_lshlrev_b32 v62, 16, v{72+q}")
        a(f"v_mul_f32 v61, v61, v62")
        round_bf16(a, 61)
        a(f"v_add_f32 v60, v60, v61")
        a(f"v_and_b32 v61, 0xffff0000, v{64+q}")
        a(f"v_and_b32 v62, 0xffff0000, v{72+q}")
        a(f"v_mul_f32 v61, v61, v62")
        round_bf16(a, 61)
        a(f"v_add_f32 v60, v60, v61")
    a("s_mov_b64 exec, s[44:45]")
    wave_reduce(a, "v_add_f32", 60, 61)
    round_bf16(a, 60)
    a(f"""
    v_mul_f32 v60, {f32bits(-1.4426950408889634)}, v60
    v_exp_f32 v60, v60
    s_nop 0
    v_add_f32 v60, 1.0, v60
    v_rcp_f32 v60, v60
    s_nop 0
    """)
    round_bf16(a, 60)
    a("""
    v_mov_b32 v5, 0
    ds_write_b32 v5, v60 offset:8192
    """)
    a.label("k4_nogate")
    a("s_waitcnt vmcnt(0)")
    for k in range(4):
        sum_tree(a, [16 + 4 * u + k for u in range(8)])
        sum_tree(a, [48 + 4 * u + k for u in range(3)])
    a("""
    v_lshlrev_b32 v5, 8, v2
    v_lshl_add_u32 v5, v3, 4, v5
    ds_write_b128 v5, v[16:19]
    ds_write_b128 v5, v[48:51] offset:128
    s_waitcnt lgkmcnt(0)
    s_barrier
    s_cmp_lg_u32 s42, 0
    s_cbranch_scc1 k4_end
    v_lshlrev_b32 v5, 2, v1
    v_mov_b32 v6, 0
    """)
    for g in range(32):
        a(f"ds_read_b32 v{16+g}, v5 offset:{g*256}")
    a("ds_read_b32 v60, v6 offset:8192")
    a("""
    v_and_b32 v7, 31, v1
    v_lshlrev_b32 v7, 1, v7
    s_lshl_b32 s35, s33, 6
    buffer_load_ushort v8, v7, s[20:23], s35 offen
    s_waitcnt lgkmcnt(0)
    """)
    sum_tree(a, range(16, 48))
    round_bf16(a, 16)
    a("""
    v_mov_b32 v17, v16
    s_nop 1
    v_permlane32_swap_b32 v16, v17
    s_nop 1
    s_waitcnt vmcnt(0)
    v_lshlrev_b32 v8, 16, v8
    v_add_f32 v17, v17, v8
    """)
    round_bf16(a, 17)
    a("""
    v_mul_f32 v16, v60, v16
    """)
    round_bf16(a, 16)
    a("v_sub_f32 v18, 1.0, v60")
    round_bf16(a, 18)
    a("v_mul_f32 v17, v18, v17")
    round_bf16(a, 17)
    a("""
    v_add_f32 v16, v16, v17
    v_cvt_pk_bf16_f32 v16, v16, v16
    s_mul_i32 s34, s32, 1152
    s_add_u32 s34, s34, s35
    v_cmp_gt_u32 vcc, 32, v1
    s_and_saveexec_b64 s[44:45], vcc
    buffer_store_short v16, v7, s[24:27], s34 offen
    """)
    a.label("k4_end")
    a("s_endpgm")
    return name, 80, 48


def main():
    out = sys.argv[1] if len(sys.argv) > 1 else f"cdna_kernels/{NAME}.s"
    hdr = open(f"cdna_kernels/{NAME}.s.ref").read().split("\n")
    hdr = [l for l in hdr if l.startswith(";") and "@launch" not in l and "Override" not in l and "grid=ceil" not in l]
    a = A()
    for l in hdr:
        a.raw(l)
    a.raw(f"; @launch kernel=k1_kernel grid=(328,1,1) block=(576,1,1) lds=40960")
    a.raw(f"; @launch kernel=k2_kernel grid=(256,1,1) block=(256,1,1) lds={K2_LDS}")
    a.raw(f"; @launch kernel=k3_kernel grid=(256,1,1) block=(576,1,1) lds={K3_LDS}")
    a.raw(f"; @launch kernel=k4_kernel grid=(36,1,1) block=(256,1,1) lds=8448")
    a.raw('.amdgcn_target "amdgcn-amd-amdhsa--gfx950"')
    descs = []
    for g in (gen_k1, gen_k2, gen_k3, gen_k4):
        descs.append(g(a))
    for d in descs:
        kernel_desc(a, *d)
    open(out, "w").write(a.text())


main()
```

```python
import sys, os, struct

NAME = "gated_mix__compressed_kv_cla__dense_activation_squared_relu__decode"
STAMP = int(os.environ.get("STAMP", "0"))

WS_QA = 0
WS_ML = 0x80000
WS_FFNP = 0x100000
WS_AP = 0x200000
WS_TS = 0x400000
WS_OP = 0x1000000

SCALE_LOG2 = (128 ** -0.5) * 1.4426950408889634
SPIN_MAX = 200000


def f32bits(x):
    return struct.unpack("<I", struct.pack("<f", x))[0]


class A:
    def __init__(self):
        self.l = []
        self.n = 0
    def __call__(self, s):
        for line in s.strip("\n").split("\n"):
            if line.strip():
                self.l.append("    " + line.strip())
    def label(self, s):
        self.l.append(s + ":")
    def raw(self, s):
        self.l.append(s)
    def uniq(self, p):
        self.n += 1
        return f"{p}_{self.n}"
    def text(self):
        return "\n".join(self.l) + "\n"


S_X, S_CKV, S_WQ, S_WUK, S_WUV, S_WO, S_W1, S_B1, S_W2, S_B2, S_GATE, S_OUT, S_DBG, S_WS, S_FP = \
    4, 8, 12, 16, 20, 24, 28, 32, 36, 40, 44, 48, 52, 56, 60
sWAVE, sH, sJ, sB, sSPLIT, sLO, sHI, sT0, sT1, sT2, sT3, sF, sCNT = 64, 65, 66, 67, 68, 69, 70, 72, 73, 74, 75, 76, 77
sEX = 78
sTS = 80

LDS_TOTAL = 163840
LA_SM = 0
LA_R1 = 2048
LA_R2 = 40960
LB_C = 0
LB_R = 131072
OROW = 1040


def srd(a, s, size):
    a(f"s_mov_b32 s{s+2}, {size}")
    a(f"s_mov_b32 s{s+3}, 0x00020000")


def dot_rows(a, W, nrows, X, acc, tmp, waits=None):
    for p in range(nrows // 2):
        if waits is not None and waits[p] is not None:
            a(f"s_waitcnt vmcnt({waits[p]})")
        for q in range(4):
            r0 = W + 4 * (2 * p) + q
            r1 = W + 4 * (2 * p + 1) + q
            a(f"v_perm_b32 v{tmp}, v{r1}, v{r0}, s{sLO}")
            a(f"v_perm_b32 v{tmp+1}, v{r1}, v{r0}, s{sHI}")
            for b in range(len(X)):
                a(f"v_dot2c_f32_bf16 v{acc[b]+2*q}, v{tmp}, v{X[b]+p}")
                a(f"v_dot2c_f32_bf16 v{acc[b]+2*q+1}, v{tmp+1}, v{X[b]+p}")


def sum_tree(a, regs):
    regs = list(regs)
    while len(regs) > 1:
        nxt = []
        for i in range(0, len(regs) - 1, 2):
            a(f"v_add_f32 v{regs[i]}, v{regs[i]}, v{regs[i+1]}")
            nxt.append(regs[i])
        if len(regs) % 2:
            nxt.append(regs[-1])
        regs = nxt


def round_bf16(a, v):
    a(f"v_cvt_pk_bf16_f32 v{v}, v{v}, v{v}")
    a(f"v_lshlrev_b32 v{v}, 16, v{v}")


def xrow_reduce(a, op, v, t):
    a(f"v_mov_b32 v{t}, v{v}")
    a("s_nop 1")
    a(f"v_permlane16_swap_b32 v{v}, v{t}")
    a("s_nop 1")
    a(f"{op} v{v}, v{v}, v{t}")
    a(f"v_mov_b32 v{t}, v{v}")
    a("s_nop 1")
    a(f"v_permlane32_swap_b32 v{v}, v{t}")
    a("s_nop 1")
    a(f"{op} v{v}, v{v}, v{t}")


def wave_reduce(a, op, v, t):
    for m in ("quad_perm:[1,0,3,2]", "quad_perm:[2,3,0,1]", "row_half_mirror", "row_mirror"):
        a("s_nop 1")
        a(f"{op}_dpp v{v}, v{v}, v{v} {m} row_mask:0xf bank_mask:0xf")
    xrow_reduce(a, op, v, t)


def skip_if_wave_ge(a, n, label):
    a(f"s_cmp_ge_u32 s{sWAVE}, {n}")
    a(f"s_cbranch_scc1 {label}")


STAMPS = {"A": [], "B": []}
def stamp(a, role, name):
    if not STAMP:
        return
    STAMPS[role].append(name)
    idx = len(STAMPS[role]) - 1
    a(f"s_memrealtime s[{sTS}:{sTS+1}]")
    a(f"s_waitcnt lgkmcnt(0)")
    a(f"s_mov_b32 s{82+idx}, s{sTS}")


def stamp_dump(a):
    if not STAMP:
        return
    a(f"v_mov_b32 v4, 0")
    a(f"v_mov_b32 v3, 0")
    a(f"s_mul_i32 s{sT3}, s2, 9")
    a(f"s_add_u32 s{sT3}, s{sT3}, s{sWAVE}")
    a(f"s_lshl_b32 s{sT3}, s{sT3}, 8")
    a(f"s_add_u32 s{sT3}, s{sT3}, {WS_TS}")
    for i in range(19):
        a(f"v_mov_b32 v2, s{82+i}")
        a(f"buffer_store_dwordx2 v[2:3], v4, s[{S_WS}:{S_WS+3}], s{sT3} offen offset:{i*8}")
        a("s_nop 1")


def signal(a, dbg_off):
    l = a.uniq("sig")
    a(f"s_cmp_lg_u32 s{sWAVE}, 0")
    a(f"s_cbranch_scc1 {l}")
    a(f"s_and_b32 s{sT0}, s2, 31")
    a(f"s_lshl_b32 s{sT0}, s{sT0}, 2")
    a(f"v_mov_b32 v2, 1")
    a(f"v_mov_b32 v3, 0")
    a(f"v_cmp_eq_u32 vcc, 0, v1")
    a(f"s_and_saveexec_b64 s[{sEX}:{sEX+1}], vcc")
    a(f"buffer_atomic_add v2, v3, s[{S_DBG}:{S_DBG+3}], s{sT0} offen offset:{dbg_off}")
    a(f"s_mov_b64 exec, s[{sEX}:{sEX+1}]")
    a.label(l)


def poll(a, dbg_off, target, wave=0):
    l = a.uniq("poll")
    a(f"s_cmp_lg_u32 s{sWAVE}, {wave}")
    a(f"s_cbranch_scc1 {l}_done")
    a(f"v_and_b32 v2, 31, v1")
    a(f"v_lshlrev_b32 v2, 2, v2")
    a(f"s_mov_b32 s{sCNT}, 0")
    a.label(f"{l}_loop")
    a(f"buffer_load_dword v3, v2, s[{S_DBG}:{S_DBG+3}], 0 offen offset:{dbg_off} sc1")
    a(f"s_add_u32 s{sCNT}, s{sCNT}, 1")
    a(f"s_waitcnt vmcnt(0)")
    a(f"v_cmp_gt_u32 vcc, {target}, v3")
    a(f"s_cmp_ge_u32 s{sCNT}, {SPIN_MAX}")
    a(f"s_cbranch_scc1 {l}_done")
    a(f"s_cbranch_vccnz {l}_loop")
    a.label(f"{l}_done")
    a("s_barrier")


def role_a(a):
    R = "A"
    a(f"""
    s_and_b32 s{sH}, s2, 7
    s_lshr_b32 s{sT0}, s2, 3
    s_and_b32 s{sT0}, s{sT0}, 3
    s_lshl_b32 s{sT0}, s{sT0}, 3
    s_add_u32 s{sH}, s{sH}, s{sT0}
    s_lshr_b32 s{sJ}, s2, 5
    v_lshrrev_b32 v5, 4, v0
    v_and_b32 v6, 15, v0
    v_lshrrev_b32 v7, 4, v1
    v_lshlrev_b32 v4, 5, v5
    v_lshlrev_b32 v3, 17, v5
    v_lshl_add_u32 v3, v6, 4, v3
    s_lshl_b32 s{sT0}, s{sH}, 8
    buffer_load_dwordx4 v[128:131], v4, s[{S_X}:{S_X+3}], 0 offen
    buffer_load_dwordx4 v[132:135], v4, s[{S_X}:{S_X+3}], 0 offen offset:16
    buffer_load_dwordx4 v[136:139], v4, s[{S_X}:{S_X+3}], 0 offen offset:1152
    buffer_load_dwordx4 v[140:143], v4, s[{S_X}:{S_X+3}], 0 offen offset:1168
    """)
    for i in range(16):
        a(f"buffer_load_dwordx4 v[{64+4*i}:{67+4*i}], v3, s[{S_WQ}:{S_WQ+3}], s{sT0} offen")
        if i < 15:
            a(f"s_add_u32 s{sT0}, s{sT0}, 8192")
    a(f"""
    v_lshlrev_b32 v8, 13, v6
    v_lshl_add_u32 v8, v7, 4, v8
    s_lshl_b32 s{sT0}, s{sJ}, 7
    s_and_b32 s{sT1}, s{sWAVE}, 7
    s_lshl_b32 s{sT1}, s{sT1}, 4
    s_add_u32 s{sT0}, s{sT0}, s{sT1}
    s_lshl_b32 s{sT0}, s{sT0}, 13
    s_lshl_b32 s{sT1}, s{sH}, 8
    s_add_u32 s{sT0}, s{sT0}, s{sT1}
    buffer_load_dwordx4 v[48:51], v8, s[{S_WUK}:{S_WUK+3}], s{sT0} offen
    buffer_load_dwordx4 v[52:55], v8, s[{S_WUK}:{S_WUK+3}], s{sT0} offen offset:64
    buffer_load_dwordx4 v[56:59], v8, s[{S_WUK}:{S_WUK+3}], s{sT0} offen offset:128
    buffer_load_dwordx4 v[60:63], v8, s[{S_WUK}:{S_WUK+3}], s{sT0} offen offset:192
    """)
    for i in range(16):
        a(f"v_mov_b32 v{144+i}, 0")
    dot_rows(a, 64, 16, [128, 136], [144, 152], 8, waits=[4 + 14 - 2 * p for p in range(8)])
    stamp(a, R, "dot")
    a(f"""
    s_nop 3
    v_lshlrev_b32 v4, 10, v5
    v_lshl_add_u32 v4, v6, 5, v4
    ds_write_b128 v4, v[144:147] offset:{LA_R1}
    ds_write_b128 v4, v[148:151] offset:{LA_R1+16}
    ds_write_b128 v4, v[152:155] offset:{LA_R1+512}
    ds_write_b128 v4, v[156:159] offset:{LA_R1+528}
    s_waitcnt lgkmcnt(0)
    s_barrier
    """)
    skip_if_wave_ge(a, 4, "a1_skip_red")
    a("v_lshlrev_b32 v4, 2, v0")
    for g in range(36):
        a(f"ds_read_b32 v{8+g}, v4 offset:{LA_R1+g*1024}")
    a("s_waitcnt lgkmcnt(0)")
    sum_tree(a, range(8, 44))
    a(f"""
    v_cvt_pk_bf16_f32 v8, v8, v8
    v_lshlrev_b32 v4, 1, v0
    ds_write_b16 v4, v8 offset:{LA_SM}
    s_waitcnt lgkmcnt(0)
    """)
    a.label("a1_skip_red")
    a("s_barrier")
    stamp(a, R, "qred")
    skip_if_wave_ge(a, 8, "a1_done")
    for i in range(20):
        a(f"v_mov_b32 v{16+i}, 0")
    a(f"""
    v_lshlrev_b32 v8, 8, v6
    v_lshl_add_u32 v8, v7, 4, v8
    v_cmp_gt_u32 vcc, 2, v6
    s_and_saveexec_b64 s[{sEX}:{sEX+1}], vcc
    ds_read_b128 v[16:19], v8 offset:{LA_SM}
    ds_read_b128 v[20:23], v8 offset:{LA_SM+64}
    ds_read_b128 v[24:27], v8 offset:{LA_SM+128}
    ds_read_b128 v[28:31], v8 offset:{LA_SM+192}
    s_mov_b64 exec, s[{sEX}:{sEX+1}]
    s_waitcnt vmcnt(0) lgkmcnt(0)
    s_nop 4
    v_mfma_f32_16x16x32_bf16 v[32:35], v[48:51], v[16:19], v[32:35]
    v_mfma_f32_16x16x32_bf16 v[32:35], v[52:55], v[20:23], v[32:35]
    v_mfma_f32_16x16x32_bf16 v[32:35], v[56:59], v[24:27], v[32:35]
    v_mfma_f32_16x16x32_bf16 v[32:35], v[60:63], v[28:31], v[32:35]
    s_lshl_b32 s{sT0}, s{sJ}, 2
    s_lshr_b32 s{sT1}, s{sWAVE}, 1
    s_add_u32 s{sT0}, s{sT0}, s{sT1}
    s_lshl_b32 s{sT0}, s{sT0}, 1
    s_lshr_b32 s{sT1}, s{sH}, 4
    s_add_u32 s{sT0}, s{sT0}, s{sT1}
    s_lshl_b32 s{sT0}, s{sT0}, 6
    s_and_b32 s{sT1}, s{sWAVE}, 1
    s_lshl_b32 s{sT1}, s{sT1}, 5
    s_add_u32 s{sT0}, s{sT0}, s{sT1}
    s_and_b32 s{sT1}, s{sH}, 15
    s_add_u32 s{sT0}, s{sT0}, s{sT1}
    s_lshl_b32 s{sT0}, s{sT0}, 4
    v_lshlrev_b32 v9, 15, v6
    v_lshrrev_b32 v10, 1, v7
    v_lshl_add_u32 v9, v10, 8, v9
    v_and_b32 v10, 1, v7
    v_lshl_add_u32 v9, v10, 3, v9
    v_cvt_pk_bf16_f32 v36, v32, v33
    v_cvt_pk_bf16_f32 v37, v34, v35
    v_cmp_gt_u32 vcc, 2, v6
    s_and_saveexec_b64 s[{sEX}:{sEX+1}], vcc
    buffer_store_dwordx2 v[36:37], v9, s[{S_WS}:{S_WS+3}], s{sT0} offen sc1
    s_mov_b64 exec, s[{sEX}:{sEX+1}]
    """)
    a.label("a1_done")
    a("s_waitcnt vmcnt(0)")
    a("s_barrier")
    signal(a, 0)
    stamp(a, R, "sig1")
    a(f"""
    v_mul_u32_u24 v10, 911, v0
    v_lshrrev_b32 v10, 16, v10
    v_mul_u32_u24 v11, 72, v10
    v_sub_u32 v11, v0, v11
    """)
    skip_if_wave_ge(a, 8, "a_nowuv")
    a(f"""
    v_lshlrev_b32 v8, 15, v5
    v_lshl_add_u32 v8, v6, 4, v8
    s_lshl_b32 s{sT0}, s{sJ}, 20
    s_lshl_b32 s{sT1}, s{sH}, 8
    s_add_u32 s{sT0}, s{sT0}, s{sT1}
    """)
    for u in range(4):
        a(f"buffer_load_dwordx4 v[{48+4*u}:{51+4*u}], v8, s[{S_WUV}:{S_WUV+3}], s{sT0} offen")
        a(f"s_add_u32 s{sT0}, s{sT0}, 8192")
    a.label("a_nowuv")
    a(f"""
    s_mov_b32 s{sF}, s2
    s_cmp_ge_u32 s{sF}, 72
    s_cbranch_scc1 ffn_done
    v_lshrrev_b32 v2, 3, v0
    v_and_b32 v3, 7, v0
    v_lshlrev_b32 v4, 4, v2
    buffer_load_dwordx4 v[128:131], v4, s[{S_X}:{S_X+3}], 0 offen
    buffer_load_dwordx4 v[136:139], v4, s[{S_X}:{S_X+3}], 0 offen offset:1152
    v_mov_b32 v8, 73728
    v_mul_lo_u32 v8, v2, v8
    v_lshl_add_u32 v8, v3, 4, v8
    s_lshl_b32 s{sT0}, s{sF}, 7
    """)
    for i in range(8):
        a(f"buffer_load_dwordx4 v[{64+4*i}:{67+4*i}], v8, s[{S_W1}:{S_W1+3}], s{sT0} offen")
        if i < 7:
            a(f"s_add_u32 s{sT0}, s{sT0}, 9216")
    a(f"""
    v_mul_u32_u24 v8, 9216, v10
    v_lshl_add_u32 v8, v11, 4, v8
    s_mul_i32 s{sT0}, s{sF}, 73728
    """)
    for u in range(8):
        if u == 4:
            a(f"s_add_u32 s{sT0}, s{sT0}, 4608")
        a(f"buffer_load_dwordx4 v[{96+4*u}:{99+4*u}], v8, s[{S_W2}:{S_W2+3}], s{sT0} offen offset:{(u%4)*1152}")
    a(f"""
    v_lshlrev_b32 v9, 1, v1
    s_lshl_b32 s{sT0}, s{sF}, 7
    buffer_load_ushort v12, v9, s[{S_B1}:{S_B1+3}], s{sT0} offen
    """)
    for i in range(16):
        a(f"v_mov_b32 v{144+i}, 0")
    dot_rows(a, 64, 8, [128, 136], [144, 152], 14, waits=[9 + 6 - 2 * p for p in range(4)])
    a(f"""
    s_nop 3
    v_lshlrev_b32 v4, 9, v2
    v_lshl_add_u32 v4, v3, 5, v4
    ds_write_b128 v4, v[144:147] offset:{LA_R1}
    ds_write_b128 v4, v[148:151] offset:{LA_R1+16}
    ds_write_b128 v4, v[152:155] offset:{LA_R1+256}
    ds_write_b128 v4, v[156:159] offset:{LA_R1+272}
    s_waitcnt lgkmcnt(0)
    s_barrier
    """)
    skip_if_wave_ge(a, 2, "ffn_skip_red")
    a("v_lshlrev_b32 v4, 2, v0")
    regs = list(range(16, 48)) + list(range(64, 96)) + list(range(128, 136))
    for g in range(72):
        a(f"ds_read_b32 v{regs[g]}, v4 offset:{LA_R1+g*512}")
    a("s_waitcnt lgkmcnt(0)")
    sum_tree(a, regs)
    a("s_waitcnt vmcnt(0)")
    round_bf16(a, 16)
    a("""
    v_lshlrev_b32 v12, 16, v12
    v_add_f32 v16, v16, v12
    """)
    round_bf16(a, 16)
    a(f"""
    v_max_f32 v16, 0, v16
    v_mul_f32 v16, v16, v16
    v_cvt_pk_bf16_f32 v16, v16, v16
    v_lshlrev_b32 v4, 1, v0
    ds_write_b16 v4, v16 offset:{LA_SM}
    s_waitcnt lgkmcnt(0)
    """)
    a.label("ffn_skip_red")
    a(f"""
    s_barrier
    v_lshlrev_b32 v4, 4, v10
    ds_read_b128 v[128:131], v4 offset:{LA_SM}
    ds_read_b128 v[136:139], v4 offset:{LA_SM+128}
    """)
    for i in range(16):
        a(f"v_mov_b32 v{144+i}, 0")
    a("s_waitcnt vmcnt(0) lgkmcnt(0)")
    dot_rows(a, 96, 8, [128, 136], [144, 152], 14)
    a(f"""
    s_nop 3
    v_mul_u32_u24 v4, 4608, v10
    v_lshl_add_u32 v4, v11, 5, v4
    ds_write_b128 v4, v[144:147] offset:{LA_R1}
    ds_write_b128 v4, v[148:151] offset:{LA_R1+16}
    ds_write_b128 v4, v[152:155] offset:{LA_R1+2304}
    ds_write_b128 v4, v[156:159] offset:{LA_R1+2320}
    s_waitcnt lgkmcnt(0)
    s_barrier
    v_lshlrev_b32 v4, 4, v0
    v_cmp_gt_u32 vcc, 288, v0
    s_and_saveexec_b64 s[{sEX}:{sEX+1}], vcc
    s_cbranch_execz ffn_st_skip
    """)
    for r in range(8):
        a(f"ds_read_b128 v[{16+4*r}:{19+4*r}], v4 offset:{LA_R1+r*4608}")
    a("s_waitcnt lgkmcnt(0)")
    for k in range(4):
        sum_tree(a, [16 + 4 * r + k for r in range(8)])
    a(f"""
    s_mul_i32 s{sT0}, s{sF}, 4608
    s_add_u32 s{sT0}, s{sT0}, {WS_FFNP}
    buffer_store_dwordx4 v[16:19], v4, s[{S_WS}:{S_WS+3}], s{sT0} offen sc1
    """)
    a.label("ffn_st_skip")
    a(f"""
    s_mov_b64 exec, s[{sEX}:{sEX+1}]
    s_barrier
    """)
    a.label("ffn_done")
    stamp(a, R, "ffn")
    a(f"""
    v_mul_u32_u24 v8, 18432, v10
    v_lshl_add_u32 v8, v11, 4, v8
    s_mul_i32 s{sT0}, s{sH}, 147456
    """)
    for u in range(16):
        if u and u % 4 == 0:
            a(f"s_add_u32 s{sT0}, s{sT0}, 4608")
        a(f"buffer_load_dwordx4 v[{64+4*u}:{67+4*u}], v8, s[{S_WO}:{S_WO+3}], s{sT0} offen offset:{(u%4)*1152}")
    poll(a, 128, 4)
    stamp(a, R, "e2")
    L3_WGT = LA_SM
    L3_CC = LA_SM + 512
    L3_PC = LA_SM + 1536
    L3_P1 = LA_R1
    L3_P2 = LA_R2
    L3_P3 = LA_R1
    skip_if_wave_ge(a, 2, "p3_noml")
    a(f"""
    v_lshlrev_b32 v4, 3, v1
    s_lshl_b32 s{sT0}, s{sWAVE}, 5
    s_add_u32 s{sT0}, s{sT0}, s{sH}
    s_lshl_b32 s{sT0}, s{sT0}, 9
    s_add_u32 s{sT0}, s{sT0}, {WS_ML}
    buffer_load_dwordx2 v[32:33], v4, s[{S_WS}:{S_WS+3}], s{sT0} offen sc1
    """)
    a.label("p3_noml")
    skip_if_wave_ge(a, 8, "p3_noop")
    a(f"""
    v_lshrrev_b32 v4, 4, v5
    v_lshlrev_b32 v4, 21, v4
    v_and_b32 v7, 15, v5
    v_lshl_add_u32 v4, v7, 12, v4
    v_lshl_add_u32 v4, v6, 4, v4
    s_lshl_b32 s{sT0}, s{sH}, 16
    s_lshl_b32 s{sT1}, s{sJ}, 8
    s_add_u32 s{sT0}, s{sT0}, s{sT1}
    s_add_u32 s{sT0}, s{sT0}, {WS_OP}
    """)
    for u in range(4):
        a(f"buffer_load_dwordx4 v[{16+4*u}:{19+4*u}], v4, s[{S_WS}:{S_WS+3}], s{sT0} offen offset:{u*1024} sc1")
    a.label("p3_noop")
    skip_if_wave_ge(a, 2, "p3_nostats")
    a("""
    s_waitcnt vmcnt(4)
    v_mov_b32 v36, v32
    """)
    wave_reduce(a, "v_max_f32", 36, 37)
    a("""
    v_sub_f32 v32, v32, v36
    v_exp_f32 v32, v32
    s_nop 0
    v_mul_f32 v36, v32, v33
    """)
    wave_reduce(a, "v_add_f32", 36, 37)
    a(f"""
    v_rcp_f32 v36, v36
    s_nop 0
    v_mul_f32 v32, v32, v36
    v_lshlrev_b32 v4, 2, v0
    ds_write_b32 v4, v32 offset:{L3_WGT}
    s_waitcnt lgkmcnt(0)
    """)
    a.label("p3_nostats")
    a("s_barrier")
    stamp(a, R, "stats")
    skip_if_wave_ge(a, 8, "p3_s1skip")
    a(f"""
    v_lshlrev_b32 v4, 4, v5
    ds_read_b128 v[32:35], v4 offset:{L3_WGT}
    s_waitcnt vmcnt(0) lgkmcnt(0)
    """)
    for u in range(4):
        for q in range(4):
            a(f"v_lshlrev_b32 v36, 16, v{16+4*u+q}")
            a(f"v_and_b32 v37, 0xffff0000, v{16+4*u+q}")
            if u == 0:
                a(f"v_mul_f32 v{40+2*q}, v32, v36")
                a(f"v_mul_f32 v{41+2*q}, v32, v37")
            else:
                a(f"v_fmac_f32 v{40+2*q}, v{32+u}, v36")
                a(f"v_fmac_f32 v{41+2*q}, v{32+u}, v37")
    a(f"""
    v_lshlrev_b32 v4, 9, v5
    v_lshl_add_u32 v4, v6, 5, v4
    ds_write_b128 v4, v[40:43] offset:{L3_P1}
    ds_write_b128 v4, v[44:47] offset:{L3_P1+16}
    s_waitcnt lgkmcnt(0)
    """)
    a.label("p3_s1skip")
    a("s_barrier")
    stamp(a, R, "s1")
    skip_if_wave_ge(a, 4, "p3_r1skip")
    a(f"""
    v_and_b32 v4, 127, v0
    v_lshlrev_b32 v4, 2, v4
    v_lshrrev_b32 v7, 7, v0
    v_lshl_add_u32 v4, v7, 13, v4
    """)
    for g in range(16):
        a(f"ds_read_b32 v{16+g}, v4 offset:{L3_P1+g*512}")
    a("s_waitcnt lgkmcnt(0)")
    sum_tree(a, range(16, 32))
    a(f"""
    v_lshlrev_b32 v4, 2, v0
    ds_write_b32 v4, v16 offset:{L3_CC}
    s_waitcnt lgkmcnt(0)
    """)
    a.label("p3_r1skip")
    a("s_barrier")
    stamp(a, R, "r1")
    skip_if_wave_ge(a, 8, "p3_s2skip")
    a(f"""
    v_lshlrev_b32 v4, 4, v5
    ds_read_b128 v[12:15], v4 offset:{L3_CC}
    ds_read_b128 v[128:131], v4 offset:{L3_CC+512}
    s_waitcnt lgkmcnt(0)
    """)
    for u in range(4):
        for q in range(4):
            a(f"v_lshlrev_b32 v16, 16, v{48+4*u+q}")
            a(f"v_and_b32 v17, 0xffff0000, v{48+4*u+q}")
            op = "v_mul_f32" if u == 0 else "v_fmac_f32"
            a(f"{op} v{32+2*q}, v{12+u}, v16")
            a(f"{op} v{33+2*q}, v{12+u}, v17")
            a(f"{op} v{40+2*q}, v{128+u}, v16")
            a(f"{op} v{41+2*q}, v{128+u}, v17")
    a(f"""
    v_lshlrev_b32 v4, 10, v5
    v_lshl_add_u32 v4, v6, 5, v4
    ds_write_b128 v4, v[32:35] offset:{L3_P2}
    ds_write_b128 v4, v[36:39] offset:{L3_P2+16}
    ds_write_b128 v4, v[40:43] offset:{L3_P2+512}
    ds_write_b128 v4, v[44:47] offset:{L3_P2+528}
    s_waitcnt lgkmcnt(0)
    """)
    a.label("p3_s2skip")
    a("s_barrier")
    stamp(a, R, "s2")
    skip_if_wave_ge(a, 4, "p3_r2skip")
    a(f"v_lshlrev_b32 v4, 2, v0")
    a(f"v_add_u32 v4, {L3_P2}, v4")
    for g in range(32):
        a(f"ds_read_b32 v{16+g}, v4 offset:{g*1024}")
    a("s_waitcnt lgkmcnt(0)")
    sum_tree(a, range(16, 48))
    a(f"""
    v_cvt_pk_bf16_f32 v16, v16, v16
    v_lshlrev_b32 v4, 1, v0
    ds_write_b16 v4, v16 offset:{L3_PC}
    s_waitcnt lgkmcnt(0)
    """)
    a.label("p3_r2skip")
    a(f"""
    s_barrier
    v_lshlrev_b32 v4, 5, v10
    ds_read_b128 v[16:19], v4 offset:{L3_PC}
    ds_read_b128 v[20:23], v4 offset:{L3_PC+16}
    ds_read_b128 v[24:27], v4 offset:{L3_PC+256}
    ds_read_b128 v[28:31], v4 offset:{L3_PC+272}
    """)
    for i in range(16):
        a(f"v_mov_b32 v{32+i}, 0")
    a("s_waitcnt vmcnt(0) lgkmcnt(0)")
    dot_rows(a, 64, 16, [16, 24], [32, 40], 12)
    a(f"""
    s_nop 3
    v_mul_u32_u24 v4, 4608, v10
    v_lshl_add_u32 v4, v11, 5, v4
    ds_write_b128 v4, v[32:35] offset:{L3_P3}
    ds_write_b128 v4, v[36:39] offset:{L3_P3+16}
    ds_write_b128 v4, v[40:43] offset:{L3_P3+2304}
    ds_write_b128 v4, v[44:47] offset:{L3_P3+2320}
    s_waitcnt lgkmcnt(0)
    s_barrier
    """)
    stamp(a, R, "s3")
    a(f"""
    v_lshlrev_b32 v4, 4, v0
    v_cmp_gt_u32 vcc, 288, v0
    s_and_saveexec_b64 s[{sEX}:{sEX+1}], vcc
    s_cbranch_execz p3_st_skip
    """)
    for r in range(8):
        a(f"ds_read_b128 v[{16+4*r}:{19+4*r}], v4 offset:{L3_P3+r*4608}")
    a("s_waitcnt lgkmcnt(0)")
    for k in range(4):
        sum_tree(a, [16 + 4 * r + k for r in range(8)])
    a(f"""
    s_mul_i32 s{sT0}, s2, 4608
    s_add_u32 s{sT0}, s{sT0}, {WS_AP}
    buffer_store_dwordx4 v[16:19], v4, s[{S_WS}:{S_WS+3}], s{sT0} offen sc1
    """)
    a.label("p3_st_skip")
    a(f"""
    s_mov_b64 exec, s[{sEX}:{sEX+1}]
    s_waitcnt vmcnt(0)
    s_barrier
    """)
    signal(a, 0)
    stamp(a, R, "sig3")
    stamp_dump(a)
    a("s_endpgm")


def role_b(a):
    R = "B"
    a(f"""
    s_sub_u32 s{sT3}, s2, 128
    s_lshr_b32 s{sB}, s{sT3}, 6
    s_and_b32 s{sSPLIT}, s{sT3}, 63
    v_lshlrev_b32 v8, 4, v1
    """)
    skip_if_wave_ge(a, 8, "b_nodma")
    a(f"""
    s_lshl_b32 s{sT0}, s{sT3}, 17
    s_lshl_b32 s{sT1}, s{sWAVE}, 14
    s_add_u32 s{sT0}, s{sT0}, s{sT1}
    """)
    for r in range(16):
        a(f"v_xor_b32 v{16+r}, {r*16}, v8")
    for r in range(16):
        a(f"s_mov_b32 m0, s{sT1}")
        a(f"s_add_u32 s{sT1}, s{sT1}, 1024")
        a(f"buffer_load_dwordx4 v{16+r}, s[{S_CKV}:{S_CKV+3}], s{sT0} offen lds")
        a(f"s_add_u32 s{sT0}, s{sT0}, 1024")
    a.label("b_nodma")
    stamp(a, R, "dma")
    poll(a, 0, 4, wave=8)
    stamp(a, R, "e1")
    a(f"""
    v_lshlrev_b32 v4, 4, v0
    s_lshl_b32 s{sT0}, s{sB}, 15
    """)
    skip_if_wave_ge(a, 8, "b_noqa")
    for u in range(4):
        a(f"buffer_load_dwordx4 v[{16+4*u}:{19+4*u}], v4, s[{S_WS}:{S_WS+3}], s{sT0} offen sc1")
        a(f"s_add_u32 s{sT0}, s{sT0}, 8192")
    a(f"""
    v_add_u32 v4, {LB_R}, v4
    s_waitcnt vmcnt(0)
    ds_write_b128 v4, v[16:19]
    ds_write_b128 v4, v[20:23] offset:8192
    ds_write_b128 v4, v[24:27] offset:16384
    ds_write_b128 v4, v[28:31] offset:24576
    s_waitcnt lgkmcnt(0)
    """)
    a.label("b_noqa")
    a("s_barrier")
    stamp(a, R, "qa")
    skip_if_wave_ge(a, 8, "b_qk_skip")
    a(f"""
    v_and_b32 v2, 15, v1
    v_lshrrev_b32 v7, 4, v1
    s_lshl_b32 s{sT1}, s{sWAVE}, 4
    v_add_u32 v3, s{sT1}, v2
    v_lshlrev_b32 v3, 10, v3
    """)
    for k4 in range(4):
        a(f"v_add_u32 v{12+k4}, {k4*4}, v7")
        a(f"v_xor_b32 v{12+k4}, v{12+k4}, v2")
        a(f"v_lshl_add_u32 v{12+k4}, v{12+k4}, 4, v3")
    a(f"v_add_u32 v9, {LB_R}, v8")
    for i in range(8):
        a(f"v_mov_b32 v{160+i}, 0")
    def qk_reads(grp):
        ab = 16 if grp % 2 == 0 else 64
        bb = 32 if grp % 2 == 0 else 80
        for k in range(4):
            ks = grp * 4 + k
            a(f"ds_read_b128 v[{ab+4*k}:{ab+4*k+3}], v{12+k} offset:{grp*256}")
            a(f"ds_read_b128 v[{bb+8*k}:{bb+8*k+3}], v9 offset:{ks*2048}")
            a(f"ds_read_b128 v[{bb+8*k+4}:{bb+8*k+7}], v9 offset:{ks*2048+1024}")
    qk_reads(0)
    for grp in range(4):
        if grp < 3:
            qk_reads(grp + 1)
        ab = 16 if grp % 2 == 0 else 64
        bb = 32 if grp % 2 == 0 else 80
        for k in range(4):
            rem = (12 if grp < 3 else 0) + 9 - 3 * k
            a(f"s_waitcnt lgkmcnt({min(rem,15)})")
            a(f"v_mfma_f32_16x16x32_bf16 v[160:163], v[{ab+4*k}:{ab+4*k+3}], v[{bb+8*k}:{bb+8*k+3}], v[160:163]")
            a(f"v_mfma_f32_16x16x32_bf16 v[164:167], v[{ab+4*k}:{ab+4*k+3}], v[{bb+8*k+4}:{bb+8*k+7}], v[164:167]")
        if grp < 2:
            a("s_nop 3")
    a(f"""
    s_nop 7
    s_nop 1
    s_mov_b32 s{sT1}, {f32bits(SCALE_LOG2)}
    """)
    for i in range(8):
        a(f"v_mul_f32 v{160+i}, s{sT1}, v{160+i}")
    a("""
    v_max3_f32 v16, v160, v161, v162
    v_max_f32 v16, v16, v163
    v_max3_f32 v17, v164, v165, v166
    v_max_f32 v17, v17, v167
    """)
    xrow_reduce(a, "v_max_f32", 16, 18)
    xrow_reduce(a, "v_max_f32", 17, 18)
    a.label("b_qk_skip")
    a("s_barrier")
    stamp(a, R, "qk")
    LB_P = LB_R
    LB_MX = LB_R + 8192
    LB_LS = LB_R + 9216
    skip_if_wave_ge(a, 8, "b_mx_skip")
    a(f"""
    v_lshlrev_b32 v18, 5, v2
    v_add_u32 v18, {LB_R}, v18
    s_lshl_b32 s{sT1}, s{sWAVE}, 2
    v_add_u32 v19, s{sT1}, v18
    ds_write_b32 v19, v16 offset:8192
    ds_write_b32 v19, v17 offset:{8192+512}
    s_waitcnt lgkmcnt(0)
    """)
    a.label("b_mx_skip")
    a("s_barrier")
    skip_if_wave_ge(a, 8, "b_sm_skip")
    a(f"""
    ds_read_b128 v[20:23], v18 offset:8192
    ds_read_b128 v[24:27], v18 offset:{8192+16}
    ds_read_b128 v[28:31], v18 offset:{8192+512}
    ds_read_b128 v[32:35], v18 offset:{8192+528}
    s_waitcnt lgkmcnt(0)
    v_max3_f32 v16, v20, v21, v22
    v_max3_f32 v16, v16, v23, v24
    v_max3_f32 v16, v16, v25, v26
    v_max_f32 v16, v16, v27
    v_max3_f32 v17, v28, v29, v30
    v_max3_f32 v17, v17, v31, v32
    v_max3_f32 v17, v17, v33, v34
    v_max_f32 v17, v17, v35
    """)
    for i in range(4):
        a(f"v_sub_f32 v{160+i}, v{160+i}, v16")
        a(f"v_sub_f32 v{164+i}, v{164+i}, v17")
    for i in range(8):
        a(f"v_exp_f32 v{160+i}, v{160+i}")
    a(f"""
    s_nop 0
    v_add_f32 v20, v160, v161
    v_add_f32 v21, v162, v163
    v_add_f32 v20, v20, v21
    v_add_f32 v21, v164, v165
    v_add_f32 v22, v166, v167
    v_add_f32 v21, v21, v22
    v_cvt_pk_bf16_f32 v22, v160, v161
    v_cvt_pk_bf16_f32 v23, v162, v163
    v_cvt_pk_bf16_f32 v24, v164, v165
    v_cvt_pk_bf16_f32 v25, v166, v167
    s_lshl_b32 s{sT1}, s{sWAVE}, 10
    s_add_u32 s{sT1}, s{sT1}, {LB_P}
    v_lshlrev_b32 v26, 4, v2
    v_lshl_add_u32 v26, v7, 1, v26
    v_add_u32 v26, s{sT1}, v26
    ds_write_b16 v26, v22
    ds_write_b16_d16_hi v26, v22 offset:8
    ds_write_b16 v26, v23 offset:512
    ds_write_b16_d16_hi v26, v23 offset:520
    ds_write_b16 v26, v24 offset:256
    ds_write_b16_d16_hi v26, v24 offset:264
    ds_write_b16 v26, v25 offset:768
    ds_write_b16_d16_hi v26, v25 offset:776
    """)
    xrow_reduce(a, "v_add_f32", 20, 27)
    xrow_reduce(a, "v_add_f32", 21, 27)
    a(f"""
    ds_write_b32 v19, v20 offset:9216
    ds_write_b32 v19, v21 offset:{9216+512}
    """)
    for i in range(32):
        a(f"v_mov_b32 v{128+i}, 0")
    a(f"""
    v_lshrrev_b32 v28, 2, v2
    v_lshlrev_b32 v28, 2, v28
    v_lshrrev_b32 v29, 5, v1
    v_lshl_add_u32 v28, v29, 1, v28
    v_and_b32 v29, 1, v7
    v_lshlrev_b32 v29, 1, v29
    v_bfe_u32 v30, v1, 1, 1
    v_add_u32 v29, v29, v30
    s_and_b32 s{sT1}, s{sWAVE}, 1
    s_lshl_b32 s{sT1}, s{sT1}, 3
    v_add_u32 v29, s{sT1}, v29
    v_and_b32 v30, 1, v1
    v_lshlrev_b32 v30, 3, v30
    s_lshr_b32 s{sT1}, s{sWAVE}, 1
    s_lshl_b32 s{sT1}, s{sT1}, 8
    v_add_u32 v30, s{sT1}, v30
    """)
    for nt in range(2):
        for t in range(2):
            d = 12 + 2 * nt + t
            a(f"v_add_u32 v31, {t}, v28")
            a(f"v_add_u32 v32, {4*nt}, v29")
            a(f"v_xor_b32 v32, v32, v31")
            a(f"v_lshl_add_u32 v{d}, v31, 10, v30")
            a(f"v_lshl_add_u32 v{d}, v32, 4, v{d}")
    a(f"""
    v_add_u32 v9, {LB_P}, v8
    s_waitcnt lgkmcnt(0)
    """)
    a.label("b_sm_skip")
    a("s_barrier")
    stamp(a, R, "sm")
    skip_if_wave_ge(a, 8, "b_pv_skip")
    for ks in range(8):
        a(f"ds_read_b128 v[{16+4*ks}:{19+4*ks}], v9 offset:{ks*1024}")
    def breads(ks):
        base = 48 + 8 * (ks & 3)
        if ks == 4:
            for d in range(12, 16):
                a(f"v_add_u32 v{d}, 0x10000, v{d}")
        for nt in range(2):
            for t in range(2):
                a(f"ds_read_b64_tr_b16 v[{base+4*nt+2*t}:{base+4*nt+2*t+1}], v{12+2*nt+t} offset:{(ks&3)*16384}")
    for ks in range(3):
        breads(ks)
    for ks in range(8):
        if ks + 3 < 8:
            breads(ks + 3)
            a("s_waitcnt lgkmcnt(12)")
        else:
            a(f"s_waitcnt lgkmcnt({4*(7-ks)})")
        base = 48 + 8 * (ks & 3)
        for nt in range(2):
            a(f"v_mfma_f32_32x32x16_bf16 v[{128+16*nt}:{143+16*nt}], v[{base+4*nt}:{base+4*nt+3}], v[{16+4*ks}:{19+4*ks}], v[{128+16*nt}:{143+16*nt}]")
        a("s_nop 1")
    a("s_nop 7")
    a("s_nop 7")
    for nt in range(2):
        b0 = 128 + 16 * nt
        for qp in range(2):
            d = 48 + 8 * nt + 4 * qp
            a(f"v_cvt_pk_bf16_f32 v{d}, v{b0+8*qp}, v{b0+8*qp+1}")
            a(f"v_cvt_pk_bf16_f32 v{d+1}, v{b0+8*qp+2}, v{b0+8*qp+3}")
            a(f"v_cvt_pk_bf16_f32 v{d+2}, v{b0+8*qp+4}, v{b0+8*qp+5}")
            a(f"v_cvt_pk_bf16_f32 v{d+3}, v{b0+8*qp+6}, v{b0+8*qp+7}")
    a("s_nop 1")
    for nt in range(2):
        for qp in range(2):
            d = 48 + 8 * nt + 4 * qp
            a(f"v_permlane32_swap_b32 v{d}, v{d+2}")
            a(f"v_permlane32_swap_b32 v{d+1}, v{d+3}")
    a.label("b_pv_skip")
    a("s_barrier")
    stamp(a, R, "pv")
    skip_if_wave_ge(a, 8, "b_ow_skip")
    a(f"""
    v_and_b32 v28, 31, v1
    v_mul_u32_u24 v28, {OROW}, v28
    v_lshrrev_b32 v29, 5, v1
    v_lshl_add_u32 v28, v29, 4, v28
    s_lshl_b32 s{sT1}, s{sWAVE}, 7
    v_add_u32 v28, s{sT1}, v28
    ds_write_b128 v28, v[48:51]
    ds_write_b128 v28, v[52:55] offset:32
    ds_write_b128 v28, v[56:59] offset:64
    ds_write_b128 v28, v[60:63] offset:96
    s_waitcnt lgkmcnt(0)
    """)
    a.label("b_ow_skip")
    a("s_barrier")
    skip_if_wave_ge(a, 8, "b_ml")
    a(f"""
    s_mul_i32 s{sT1}, s{sWAVE}, {4*OROW}
    v_add_u32 v29, s{sT1}, v8
    ds_read_b128 v[12:15], v29
    ds_read_b128 v[16:19], v29 offset:{OROW}
    ds_read_b128 v[20:23], v29 offset:{2*OROW}
    ds_read_b128 v[24:27], v29 offset:{3*OROW}
    s_lshl_b32 s{sT0}, s{sB}, 5
    s_lshl_b32 s{sT1}, s{sWAVE}, 2
    s_add_u32 s{sT0}, s{sT0}, s{sT1}
    s_lshl_b32 s{sT0}, s{sT0}, 6
    s_add_u32 s{sT0}, s{sT0}, s{sSPLIT}
    s_lshl_b32 s{sT0}, s{sT0}, 10
    s_add_u32 s{sT0}, s{sT0}, {WS_OP}
    """)
    for u in range(4):
        a(f"s_waitcnt lgkmcnt({3-u})")
        a(f"buffer_store_dwordx4 v[{12+4*u}:{15+4*u}], v8, s[{S_WS}:{S_WS+3}], s{sT0} offen sc1")
        a(f"s_add_u32 s{sT0}, s{sT0}, {64*1024}")
    a("s_branch b_st_done")
    a.label("b_ml")
    a(f"""
    v_lshlrev_b32 v28, 5, v1
    v_add_u32 v28, {LB_R}, v28
    v_cmp_gt_u32 vcc, 32, v1
    s_and_saveexec_b64 s[{sEX}:{sEX+1}], vcc
    ds_read_b128 v[12:15], v28 offset:8192
    ds_read_b128 v[16:19], v28 offset:{8192+16}
    ds_read_b128 v[20:23], v28 offset:9216
    ds_read_b128 v[24:27], v28 offset:{9216+16}
    s_waitcnt lgkmcnt(0)
    v_max3_f32 v12, v12, v13, v14
    v_max3_f32 v12, v12, v15, v16
    v_max3_f32 v12, v12, v17, v18
    v_max_f32 v12, v12, v19
    """)
    sum_tree(a, range(20, 28))
    a(f"""
    v_mov_b32 v13, v20
    v_lshlrev_b32 v28, 9, v1
    s_lshl_b32 s{sT0}, s{sB}, 14
    s_lshl_b32 s{sT1}, s{sSPLIT}, 3
    s_add_u32 s{sT0}, s{sT0}, s{sT1}
    s_add_u32 s{sT0}, s{sT0}, {WS_ML}
    buffer_store_dwordx2 v[12:13], v28, s[{S_WS}:{S_WS+3}], s{sT0} offen sc1
    s_mov_b64 exec, s[{sEX}:{sEX+1}]
    """)
    a.label("b_st_done")
    a("s_waitcnt vmcnt(0)")
    a("s_barrier")
    signal(a, 128)
    stamp(a, R, "sig2")
    if STAMP:
        a(f"s_cmp_ge_u32 s{sT3}, 36")
        a("s_cbranch_scc0 b_p4")
        stamp_dump(a)
        a("s_endpgm")
        a.label("b_p4")
    else:
        a(f"""
        s_cmp_ge_u32 s{sT3}, 36
        s_cbranch_scc1 k_end
        """)
    LP_SM = 65536 - 256
    a(f"""
    s_cmp_ge_u32 s{sT3}, 18
    s_cselect_b32 s{sB}, 1, 0
    s_mul_i32 s{sJ}, s{sB}, 18
    s_sub_u32 s{sJ}, s{sT3}, s{sJ}
    s_cmp_lg_u32 s{sWAVE}, 4
    s_cbranch_scc1 p4_nogate
    v_mov_b32 v60, 0
    v_lshlrev_b32 v4, 5, v1
    s_mul_i32 s{sT0}, s{sB}, 1152
    v_cmp_gt_u32 vcc, 36, v1
    s_and_saveexec_b64 s[{sEX}:{sEX+1}], vcc
    buffer_load_dwordx4 v[64:67], v4, s[{S_X}:{S_X+3}], s{sT0} offen
    buffer_load_dwordx4 v[68:71], v4, s[{S_X}:{S_X+3}], s{sT0} offen offset:16
    buffer_load_dwordx4 v[72:75], v4, s[{S_GATE}:{S_GATE+3}], 0 offen
    buffer_load_dwordx4 v[76:79], v4, s[{S_GATE}:{S_GATE+3}], 0 offen offset:16
    s_waitcnt vmcnt(0)
    """)
    for q in range(8):
        a(f"v_lshlrev_b32 v61, 16, v{64+q}")
        a(f"v_lshlrev_b32 v62, 16, v{72+q}")
        a(f"v_mul_f32 v61, v61, v62")
        round_bf16(a, 61)
        a(f"v_add_f32 v60, v60, v61")
        a(f"v_and_b32 v61, 0xffff0000, v{64+q}")
        a(f"v_and_b32 v62, 0xffff0000, v{72+q}")
        a(f"v_mul_f32 v61, v61, v62")
        round_bf16(a, 61)
        a(f"v_add_f32 v60, v60, v61")
    a(f"s_mov_b64 exec, s[{sEX}:{sEX+1}]")
    wave_reduce(a, "v_add_f32", 60, 61)
    round_bf16(a, 60)
    a(f"""
    v_mul_f32 v60, {f32bits(-1.4426950408889634)}, v60
    v_exp_f32 v60, v60
    s_nop 0
    v_add_f32 v60, 1.0, v60
    v_rcp_f32 v60, v60
    s_nop 0
    """)
    round_bf16(a, 60)
    a(f"""
    v_mov_b32 v4, 0
    ds_write_b32 v4, v60 offset:{LP_SM}
    s_waitcnt lgkmcnt(0)
    """)
    a.label("p4_nogate")
    poll(a, 0, 8)
    stamp(a, R, "e3")
    skip_if_wave_ge(a, 4, "p4_ld_skip")
    a(f"""
    v_lshrrev_b32 v2, 3, v0
    v_and_b32 v3, 7, v0
    v_mul_u32_u24 v4, 4608, v2
    v_lshl_add_u32 v4, v3, 4, v4
    s_mul_i32 s{sT0}, s{sB}, 2304
    s_lshl_b32 s{sT1}, s{sJ}, 7
    s_add_u32 s{sT0}, s{sT0}, s{sT1}
    s_add_u32 s{sT1}, s{sT0}, {WS_AP}
    """)
    for u in range(4):
        a(f"buffer_load_dwordx4 v[{16+4*u}:{19+4*u}], v4, s[{S_WS}:{S_WS+3}], s{sT1} offen sc1")
        a(f"s_add_u32 s{sT1}, s{sT1}, {32*4608}")
    for u in range(3):
        a(f"buffer_load_dwordx4 v[{48+4*u}:{51+4*u}], v4, s[{S_FP}:{S_FP+3}], s{sT0} offen sc1")
        a(f"s_add_u32 s{sT0}, s{sT0}, {32*4608}")
    a("s_waitcnt vmcnt(0)")
    for k in range(4):
        sum_tree(a, [16 + 4 * u + k for u in range(4)])
        sum_tree(a, [48 + 4 * u + k for u in range(3)])
    a(f"""
    v_lshlrev_b32 v4, 8, v2
    v_lshl_add_u32 v4, v3, 4, v4
    ds_write_b128 v4, v[16:19] offset:40960
    ds_write_b128 v4, v[48:51] offset:{40960+128}
    s_waitcnt lgkmcnt(0)
    """)
    a.label("p4_ld_skip")
    a(f"""
    s_barrier
    s_cmp_lg_u32 s{sWAVE}, 0
    s_cbranch_scc1 p4_end
    v_lshlrev_b32 v4, 2, v1
    v_mov_b32 v3, 0
    """)
    for g in range(32):
        a(f"ds_read_b32 v{16+g}, v4 offset:{40960+g*256}")
    a(f"""
    ds_read_b32 v60, v3 offset:{LP_SM}
    v_and_b32 v7, 31, v1
    v_lshlrev_b32 v7, 1, v7
    s_lshl_b32 s{sT1}, s{sJ}, 6
    buffer_load_ushort v8, v7, s[{S_B2}:{S_B2+3}], s{sT1} offen
    s_waitcnt lgkmcnt(0)
    """)
    sum_tree(a, range(16, 48))
    round_bf16(a, 16)
    a("""
    v_mov_b32 v17, v16
    s_nop 1
    v_permlane32_swap_b32 v16, v17
    s_nop 1
    s_waitcnt vmcnt(0)
    v_lshlrev_b32 v8, 16, v8
    v_add_f32 v17, v17, v8
    """)
    round_bf16(a, 17)
    a("v_mul_f32 v16, v60, v16")
    round_bf16(a, 16)
    a("v_sub_f32 v18, 1.0, v60")
    round_bf16(a, 18)
    a("v_mul_f32 v17, v18, v17")
    round_bf16(a, 17)
    a(f"""
    v_add_f32 v16, v16, v17
    v_cvt_pk_bf16_f32 v16, v16, v16
    s_mul_i32 s{sT0}, s{sB}, 1152
    s_add_u32 s{sT0}, s{sT0}, s{sT1}
    v_cmp_gt_u32 vcc, 32, v1
    s_and_saveexec_b64 s[{sEX}:{sEX+1}], vcc
    buffer_store_short v16, v7, s[{S_OUT}:{S_OUT+3}], s{sT0} offen
    s_mov_b64 exec, s[{sEX}:{sEX+1}]
    """)
    a.label("p4_end")
    stamp(a, R, "end")
    stamp_dump(a)


def gen(a):
    name = NAME + "_kernel"
    a.raw(".text")
    a.raw(f".globl {name}")
    a.raw(".p2align 8")
    a.raw(f".type {name},@function")
    a.label(name)
    a(f"""
    s_cmp_ge_u32 s2, 256
    s_cbranch_scc1 k_end
    s_load_dwordx2 s[{S_X}:{S_X+1}], s[0:1], 0
    s_load_dwordx2 s[{S_CKV}:{S_CKV+1}], s[0:1], 8
    s_load_dwordx2 s[{S_WQ}:{S_WQ+1}], s[0:1], 16
    s_load_dwordx2 s[{S_WUK}:{S_WUK+1}], s[0:1], 24
    s_load_dwordx2 s[{S_WUV}:{S_WUV+1}], s[0:1], 32
    s_load_dwordx2 s[{S_WO}:{S_WO+1}], s[0:1], 40
    s_load_dwordx2 s[{S_W1}:{S_W1+1}], s[0:1], 56
    s_load_dwordx2 s[{S_B1}:{S_B1+1}], s[0:1], 64
    s_load_dwordx2 s[{S_W2}:{S_W2+1}], s[0:1], 72
    s_load_dwordx2 s[{S_B2}:{S_B2+1}], s[0:1], 80
    s_load_dwordx2 s[{S_GATE}:{S_GATE+1}], s[0:1], 88
    s_load_dwordx2 s[{S_OUT}:{S_OUT+1}], s[0:1], 96
    s_load_dwordx2 s[{S_DBG}:{S_DBG+1}], s[0:1], 104
    s_load_dwordx2 s[{S_WS}:{S_WS+1}], s[0:1], 112
    s_load_dwordx2 s[{S_FP}:{S_FP+1}], s[0:1], 112
    """)
    srd(a, S_X, 2304); srd(a, S_CKV, 16777216); srd(a, S_WQ, 4718592); srd(a, S_WUK, 4194304)
    srd(a, S_WUV, 4194304); srd(a, S_WO, 4718592); srd(a, S_W1, 5308416); srd(a, S_B1, 9216)
    srd(a, S_W2, 5308416); srd(a, S_B2, 1152); srd(a, S_GATE, 1152); srd(a, S_OUT, 2304)
    srd(a, S_DBG, 256); srd(a, S_WS, 268435456); srd(a, S_FP, 72 * 4608)
    a(f"""
    s_mov_b32 s{sLO}, 0x05040100
    s_mov_b32 s{sHI}, 0x07060302
    v_readfirstlane_b32 s{sWAVE}, v0
    s_lshr_b32 s{sWAVE}, s{sWAVE}, 6
    v_and_b32 v1, 63, v0
    s_waitcnt lgkmcnt(0)
    s_add_u32 s{S_FP}, s{S_FP}, {WS_FFNP}
    s_addc_u32 s{S_FP+1}, s{S_FP+1}, 0
    """)
    stamp(a, "A", "start");
    if STAMP:
        STAMPS["B"].append("start")
    a("""
    s_cmp_ge_u32 s2, 128
    s_cbranch_scc1 role_b
    """)
    role_a(a)
    a.label("role_b")
    role_b(a)
    a.label("k_end")
    a("s_endpgm")
    a.raw('.section .rodata,"a"')
    a.raw(".p2align 6")
    a.raw(f".amdhsa_kernel {name}")
    a.raw("  .amdhsa_next_free_vgpr 168")
    a.raw("  .amdhsa_next_free_sgpr 102")
    a.raw("  .amdhsa_accum_offset 168")
    a.raw("  .amdhsa_group_segment_fixed_size 0")
    a.raw("  .amdhsa_kernarg_size 120")
    a.raw("  .amdhsa_user_sgpr_count 2")
    a.raw("  .amdhsa_user_sgpr_kernarg_segment_ptr 1")
    a.raw("  .amdhsa_system_sgpr_workgroup_id_x 1")
    a.raw(".end_amdhsa_kernel")


def main():
    out = sys.argv[1] if len(sys.argv) > 1 else f"cdna_kernels/{NAME}.s"
    hdr = open(f"cdna_kernels/{NAME}.s.ref").read().split("\n")
    hdr = [l for l in hdr if l.startswith(";") and "@launch" not in l]
    a = A()
    for l in hdr:
        a.raw(l)
    a.raw(f"; @launch grid=(256,1,1) block=(576,1,1) lds={LDS_TOTAL}")
    a.raw('.amdgcn_target "amdgcn-amd-amdhsa--gfx950"')
    gen(a)
    open(out, "w").write(a.text())
    if STAMP:
        print(STAMPS)


main()
```

```python
import sys, os, struct

NAME = "gated_mix__compressed_kv_cla__dense_activation_squared_relu__decode"
STAMP = int(os.environ.get("STAMP", "0"))
WQPOL = os.environ.get("WQPOL", "nt")
BDELAY = os.environ.get("BDELAY", "nonce")
WOPOL = os.environ.get("WOPOL", "nt")

WS_QA = 0
WS_ML = 0x80000
WS_FFNP = 0x100000
WS_AP = 0x200000
WS_TS = 0x400000
WS_QP = 0xA0000
WS_FL = 0xF0000
WS_OP = 0x1000000

SCALE_LOG2 = (128 ** -0.5) * 1.4426950408889634
SPIN_MAX = 200000


def f32bits(x):
    return struct.unpack("<I", struct.pack("<f", x))[0]


class A:
    def __init__(self):
        self.l = []
        self.n = 0
    def __call__(self, s):
        for line in s.strip("\n").split("\n"):
            if line.strip():
                self.l.append("    " + line.strip())
    def label(self, s):
        self.l.append(s + ":")
    def raw(self, s):
        self.l.append(s)
    def uniq(self, p):
        self.n += 1
        return f"{p}_{self.n}"
    def text(self):
        return "\n".join(self.l) + "\n"


S_X, S_CKV, S_WQ, S_WUK, S_WUV, S_WO, S_W1, S_B1, S_W2, S_B2, S_GATE, S_OUT, S_DBG, S_WS, S_FP = \
    4, 8, 12, 16, 20, 24, 28, 32, 36, 40, 44, 48, 52, 56, 60
sWAVE, sH, sJ, sB, sSPLIT, sLO, sHI, sT0, sT1, sT2, sT3, sF, sCNT = 64, 65, 66, 67, 68, 69, 70, 72, 73, 74, 75, 76, 77
sEX = 78
sTS = 80
sNONCE = 71
sIDX = 3
sQA = 68

LDS_TOTAL = 163840
LA_SM = 0
LA_R1 = 2048
LA_R2 = 40960
LB_C = 0
LB_R = 131072
OROW = 1040


def srd(a, s, size):
    a(f"s_mov_b32 s{s+2}, {size}")
    a(f"s_mov_b32 s{s+3}, 0x00020000")


def dot_rows(a, W, nrows, X, acc, tmp, waits=None):
    for p in range(nrows // 2):
        if waits is not None and waits[p] is not None:
            a(f"s_waitcnt vmcnt({waits[p]})")
        for q in range(4):
            r0 = W + 4 * (2 * p) + q
            r1 = W + 4 * (2 * p + 1) + q
            a(f"v_perm_b32 v{tmp}, v{r1}, v{r0}, s{sLO}")
            a(f"v_perm_b32 v{tmp+1}, v{r1}, v{r0}, s{sHI}")
            for b in range(len(X)):
                a(f"v_dot2c_f32_bf16 v{acc[b]+2*q}, v{tmp}, v{X[b]+p}")
                a(f"v_dot2c_f32_bf16 v{acc[b]+2*q+1}, v{tmp+1}, v{X[b]+p}")


def sum_tree(a, regs):
    regs = list(regs)
    while len(regs) > 1:
        nxt = []
        for i in range(0, len(regs) - 1, 2):
            a(f"v_add_f32 v{regs[i]}, v{regs[i]}, v{regs[i+1]}")
            nxt.append(regs[i])
        if len(regs) % 2:
            nxt.append(regs[-1])
        regs = nxt


def round_bf16(a, v):
    a(f"v_cvt_pk_bf16_f32 v{v}, v{v}, v{v}")
    a(f"v_lshlrev_b32 v{v}, 16, v{v}")


def xrow_reduce(a, op, v, t):
    a(f"v_mov_b32 v{t}, v{v}")
    a("s_nop 1")
    a(f"v_permlane16_swap_b32 v{v}, v{t}")
    a("s_nop 1")
    a(f"{op} v{v}, v{v}, v{t}")
    a(f"v_mov_b32 v{t}, v{v}")
    a("s_nop 1")
    a(f"v_permlane32_swap_b32 v{v}, v{t}")
    a("s_nop 1")
    a(f"{op} v{v}, v{v}, v{t}")


def wave_reduce(a, op, v, t):
    for m in ("quad_perm:[1,0,3,2]", "quad_perm:[2,3,0,1]", "row_half_mirror", "row_mirror"):
        a("s_nop 1")
        a(f"{op}_dpp v{v}, v{v}, v{v} {m} row_mask:0xf bank_mask:0xf")
    xrow_reduce(a, op, v, t)


def skip_if_wave_ge(a, n, label):
    a(f"s_cmp_ge_u32 s{sWAVE}, {n}")
    a(f"s_cbranch_scc1 {label}")


STAMPS = {"A": [], "B": []}
def stamp(a, role, name):
    if not STAMP:
        return
    STAMPS[role].append(name)
    idx = len(STAMPS[role]) - 1
    a(f"s_memrealtime s[{sTS}:{sTS+1}]")
    a(f"s_waitcnt lgkmcnt(0)")
    a(f"s_mov_b32 s{82+idx}, s{sTS}")


def stamp_dump(a):
    if not STAMP:
        return
    a(f"v_mov_b32 v4, 0")
    a(f"v_mov_b32 v3, 0")
    a(f"s_mul_i32 s{sT3}, s2, 9")
    a(f"s_add_u32 s{sT3}, s{sT3}, s{sWAVE}")
    a(f"s_lshl_b32 s{sT3}, s{sT3}, 8")
    a(f"s_add_u32 s{sT3}, s{sT3}, {WS_TS}")
    for i in range(19):
        a(f"v_mov_b32 v2, s{82+i}")
        a(f"buffer_store_dwordx2 v[2:3], v4, s[{S_WS}:{S_WS+3}], s{sT3} offen offset:{i*8}")
        a("s_nop 1")


def signal(a, e):
    l = a.uniq("sig")
    a(f"s_cmp_lg_u32 s{sWAVE}, 8")
    a(f"s_cbranch_scc1 {l}")
    a(f"s_lshl_b32 s{sT0}, s{sIDX}, 2")
    a(f"s_add_u32 s{sT0}, s{sT0}, {WS_FL + e*8192}")
    a(f"v_mov_b32 v2, s{sNONCE}")
    a(f"v_lshlrev_b32 v3, 10, v1")
    a(f"v_cmp_gt_u32 vcc, 8, v1")
    a(f"s_and_saveexec_b64 s[{sEX}:{sEX+1}], vcc")
    a(f"buffer_store_dword v2, v3, s[{S_WS}:{S_WS+3}], s{sT0} offen sc1")
    a(f"s_mov_b64 exec, s[{sEX}:{sEX+1}]")
    a.label(l)


def poll(a, e):
    l = a.uniq("poll")
    a(f"s_cmp_lg_u32 s{sWAVE}, 8")
    a(f"s_cbranch_scc1 {l}_done")
    a(f"v_and_b32 v2, 31, v1")
    a(f"v_lshlrev_b32 v2, 4, v2")
    a(f"s_and_b32 s{sT0}, s2, 7")
    a(f"s_lshl_b32 s{sT0}, s{sT0}, 10")
    a(f"s_add_u32 s{sT0}, s{sT0}, {WS_FL + e*8192}")
    a(f"s_mov_b32 s{sCNT}, 0")
    a.label(f"{l}_loop")
    a(f"buffer_load_dwordx4 v[12:15], v2, s[{S_WS}:{S_WS+3}], s{sT0} offen sc1")
    a(f"s_add_u32 s{sCNT}, s{sCNT}, 1")
    a(f"s_waitcnt vmcnt(0)")
    a(f"v_xor_b32 v12, s{sNONCE}, v12")
    a(f"v_xor_b32 v13, s{sNONCE}, v13")
    a(f"v_xor_b32 v14, s{sNONCE}, v14")
    a(f"v_xor_b32 v15, s{sNONCE}, v15")
    a(f"v_or3_b32 v12, v12, v13, v14")
    a(f"v_or_b32 v12, v12, v15")
    a(f"v_cmp_ne_u32 vcc, 0, v12")
    a(f"s_cmp_ge_u32 s{sCNT}, {SPIN_MAX}")
    a(f"s_cbranch_scc1 {l}_done")
    a(f"s_cbranch_vccnz {l}_loop")
    a.label(f"{l}_done")
    a("s_barrier")


def any_sentinel(a, regs, t):
    regs = list(regs)
    a(f"v_max3_u32 v{t}, v{regs[0]}, v{regs[1]}, v{regs[2]}")
    i = 3
    while i + 1 < len(regs):
        a(f"v_max3_u32 v{t}, v{t}, v{regs[i]}, v{regs[i+1]}")
        i += 2
    if i < len(regs):
        a(f"v_max_u32 v{t}, v{t}, v{regs[i]}")
    a(f"v_cmp_eq_u32 vcc, -1, v{t}")


def retry_tail(a, l):
    a(f"s_add_u32 s{sCNT}, s{sCNT}, 1")
    a(f"s_cmp_ge_u32 s{sCNT}, {SPIN_MAX}")
    a(f"s_cbranch_scc1 {l}_ok")
    a(f"s_cbranch_vccnz {l}_retry")
    a.label(f"{l}_ok")


def nonce_wait(a, first_issued):
    l = a.uniq("nw")
    a(f"s_mov_b32 s{sCNT}, 0")
    a(f"v_mov_b32 v14, 0")
    if first_issued:
        a(f"s_branch {l}_chk")
    a.label(f"{l}_loop")
    a(f"buffer_load_dword v13, v14, s[{S_DBG}:{S_DBG+3}], 0 offen sc1")
    a.label(f"{l}_chk")
    a(f"s_add_u32 s{sCNT}, s{sCNT}, 1")
    a(f"s_waitcnt vmcnt(0)")
    a(f"v_readfirstlane_b32 s{sNONCE}, v13")
    a(f"s_cmp_ge_u32 s{sCNT}, {SPIN_MAX}")
    a(f"s_cbranch_scc1 {l}_done")
    a(f"s_cmp_eq_u32 s{sNONCE}, 0")
    a(f"s_cbranch_scc1 {l}_loop")
    a.label(f"{l}_done")


def role_a(a):
    R = "A"
    a(f"""
    s_and_b32 s{sH}, s2, 7
    s_lshr_b32 s{sT0}, s2, 3
    s_and_b32 s{sT0}, s{sT0}, 3
    s_lshl_b32 s{sT0}, s{sT0}, 3
    s_add_u32 s{sH}, s{sH}, s{sT0}
    s_lshr_b32 s{sJ}, s2, 5
    s_mov_b32 s{sIDX}, s2
    v_lshrrev_b32 v5, 4, v0
    v_and_b32 v6, 15, v0
    v_lshrrev_b32 v7, 4, v1
    v_mul_u32_u24 v10, 911, v0
    v_lshrrev_b32 v10, 16, v10
    v_mul_u32_u24 v11, 72, v10
    v_sub_u32 v11, v0, v11
    v_lshlrev_b32 v8, 13, v6
    v_lshl_add_u32 v8, v7, 4, v8
    s_lshl_b32 s{sT0}, s{sJ}, 7
    s_lshl_b32 s{sT1}, s{sWAVE}, 4
    s_add_u32 s{sT0}, s{sT0}, s{sT1}
    s_lshl_b32 s{sT0}, s{sT0}, 13
    s_lshl_b32 s{sT1}, s{sH}, 8
    s_add_u32 s{sT0}, s{sT0}, s{sT1}
    s_cmp_ge_u32 s{sWAVE}, 8
    s_cbranch_scc1 a0_nowuk
    buffer_load_dwordx4 v[48:51], v8, s[{S_WUK}:{S_WUK+3}], s{sT0} offen nt
    buffer_load_dwordx4 v[52:55], v8, s[{S_WUK}:{S_WUK+3}], s{sT0} offen offset:64 nt
    buffer_load_dwordx4 v[56:59], v8, s[{S_WUK}:{S_WUK+3}], s{sT0} offen offset:128 nt
    buffer_load_dwordx4 v[60:63], v8, s[{S_WUK}:{S_WUK+3}], s{sT0} offen offset:192 nt
    a0_nowuk:
    v_lshlrev_b32 v4, 3, v5
    s_mul_i32 s{sT1}, s{sJ}, 288
    v_lshlrev_b32 v3, 15, v5
    v_lshl_add_u32 v3, v6, 4, v3
    s_mul_i32 s{sT0}, s{sJ}, {144*8192}
    s_lshl_b32 s{sT2}, s{sH}, 8
    s_add_u32 s{sT0}, s{sT0}, s{sT2}
    buffer_load_dwordx2 v[128:129], v4, s[{S_X}:{S_X+3}], s{sT1} offen
    buffer_load_dwordx2 v[136:137], v4, s[{S_X}:{S_X+3}], s{sT1} offen offset:1152
    """)
    for i in range(4):
        a(f"buffer_load_dwordx4 v[{64+4*i}:{67+4*i}], v3, s[{S_WQ}:{S_WQ+3}], s{sT0} offen nt")
        if i < 3:
            a(f"s_add_u32 s{sT0}, s{sT0}, 8192")
    a(f"""
    v_mov_b32 v14, 0
    s_cmp_lg_u32 s{sWAVE}, 8
    s_cbranch_scc1 a0_non
    buffer_load_dword v13, v14, s[{S_DBG}:{S_DBG+3}], 0 offen sc1
    a0_non:
    """)
    a(f"""
    s_lshl_b32 s{sQA}, s{sJ}, 2
    s_and_b32 s{sT2}, s{sWAVE}, 7
    s_lshr_b32 s{sT1}, s{sT2}, 1
    s_add_u32 s{sQA}, s{sQA}, s{sT1}
    s_lshl_b32 s{sQA}, s{sQA}, 1
    s_lshr_b32 s{sT1}, s{sH}, 4
    s_add_u32 s{sQA}, s{sQA}, s{sT1}
    s_lshl_b32 s{sQA}, s{sQA}, 6
    s_and_b32 s{sT1}, s{sT2}, 1
    s_lshl_b32 s{sT1}, s{sT1}, 5
    s_add_u32 s{sQA}, s{sQA}, s{sT1}
    s_and_b32 s{sT1}, s{sH}, 15
    s_add_u32 s{sQA}, s{sQA}, s{sT1}
    s_lshl_b32 s{sQA}, s{sQA}, 4
    v_lshlrev_b32 v9, 15, v6
    v_lshrrev_b32 v2, 1, v7
    v_lshl_add_u32 v9, v2, 8, v9
    v_and_b32 v2, 1, v7
    v_lshl_add_u32 v9, v2, 3, v9
    """)
    for i in range(16):
        a(f"v_mov_b32 v{144+i}, 0")
    dot_rows(a, 64, 4, [128, 136], [144, 152], 20, waits=[2, 0])
    stamp(a, R, "dot")
    a(f"""
    s_nop 3
    v_lshlrev_b32 v4, 10, v5
    v_lshl_add_u32 v4, v6, 5, v4
    ds_write_b128 v4, v[144:147] offset:{LA_R1}
    ds_write_b128 v4, v[148:151] offset:{LA_R1+16}
    ds_write_b128 v4, v[152:155] offset:{LA_R1+512}
    ds_write_b128 v4, v[156:159] offset:{LA_R1+528}
    s_cmp_lg_u32 s{sWAVE}, 8
    s_cbranch_scc1 a1_non
    """)
    nonce_wait(a, True)
    a(f"ds_write_b32 v14, v13 offset:{LA_SM+1024}")
    a.label("a1_non")
    a("""
    s_waitcnt lgkmcnt(0)
    s_barrier
    """)
    a(f"""
    v_mov_b32 v14, 0
    ds_read_b32 v13, v14 offset:{LA_SM+1024}
    s_waitcnt lgkmcnt(0)
    v_readfirstlane_b32 s{sNONCE}, v13
    """)
    stamp(a, R, "bar1")
    if BDELAY == "flag":
        signal(a, 3)
    skip_if_wave_ge(a, 4, "a1_skip_red")
    a("v_lshlrev_b32 v4, 2, v0")
    a("v_mov_b32 v14, 0")
    a(f"ds_read_b32 v13, v14 offset:{LA_SM+1024}")
    for g in range(36):
        a(f"ds_read_b32 v{80+g}, v4 offset:{LA_R1+g*1024}")
    a("s_waitcnt lgkmcnt(0)")
    sum_tree(a, range(80, 116))
    a(f"""
    v_mov_b32 v12, v80
    v_lshlrev_b32 v4, 3, v0
    s_lshl_b32 s{sT0}, s{sH}, 13
    s_add_u32 s{sT0}, s{sT0}, {WS_QP}
    s_lshl_b32 s{sT1}, s{sJ}, 11
    s_add_u32 s{sT1}, s{sT1}, s{sT0}
    buffer_store_dwordx2 v[12:13], v4, s[{S_WS}:{S_WS+3}], s{sT1} offen sc1
    s_mov_b32 s{sCNT}, 0
    """)
    stamp(a, R, "pub")
    a.label("qx_retry")
    a(f"""
    buffer_load_dwordx2 v[16:17], v4, s[{S_WS}:{S_WS+3}], s{sT0} offen sc1
    buffer_load_dwordx2 v[18:19], v4, s[{S_WS}:{S_WS+3}], s{sT0} offen offset:2048 sc1
    s_add_u32 s{sT1}, s{sT0}, 4096
    buffer_load_dwordx2 v[20:21], v4, s[{S_WS}:{S_WS+3}], s{sT1} offen sc1
    buffer_load_dwordx2 v[22:23], v4, s[{S_WS}:{S_WS+3}], s{sT1} offen offset:2048 sc1
    s_waitcnt vmcnt(0)
    v_xor_b32 v17, v17, v13
    v_xor_b32 v19, v19, v13
    v_xor_b32 v21, v21, v13
    v_xor_b32 v23, v23, v13
    v_or3_b32 v17, v17, v19, v21
    v_or_b32 v17, v17, v23
    v_cmp_ne_u32 vcc, 0, v17
    """)
    retry_tail(a, "qx")
    a(f"""
    v_add_f32 v16, v16, v18
    v_add_f32 v20, v20, v22
    v_add_f32 v16, v16, v20
    v_cvt_pk_bf16_f32 v16, v16, v16
    v_lshlrev_b32 v4, 1, v0
    ds_write_b16 v4, v16 offset:{LA_SM}
    s_waitcnt lgkmcnt(0)
    """)
    a.label("a1_skip_red")
    a("s_barrier")
    stamp(a, R, "qred")
    skip_if_wave_ge(a, 8, "a1_done")
    for i in range(20):
        a(f"v_mov_b32 v{16+i}, 0")
    a(f"""
    v_lshlrev_b32 v8, 8, v6
    v_lshl_add_u32 v8, v7, 4, v8
    v_cmp_gt_u32 vcc, 2, v6
    s_and_saveexec_b64 s[{sEX}:{sEX+1}], vcc
    ds_read_b128 v[16:19], v8 offset:{LA_SM}
    ds_read_b128 v[20:23], v8 offset:{LA_SM+64}
    ds_read_b128 v[24:27], v8 offset:{LA_SM+128}
    ds_read_b128 v[28:31], v8 offset:{LA_SM+192}
    s_mov_b64 exec, s[{sEX}:{sEX+1}]
    s_waitcnt vmcnt(0) lgkmcnt(0)
    s_nop 4
    v_mfma_f32_16x16x32_bf16 v[32:35], v[48:51], v[16:19], v[32:35]
    v_mfma_f32_16x16x32_bf16 v[32:35], v[52:55], v[20:23], v[32:35]
    v_mfma_f32_16x16x32_bf16 v[32:35], v[56:59], v[24:27], v[32:35]
    v_mfma_f32_16x16x32_bf16 v[32:35], v[60:63], v[28:31], v[32:35]
    s_nop 7
    s_nop 1
    v_cvt_pk_bf16_f32 v36, v32, v33
    v_cvt_pk_bf16_f32 v37, v34, v35
    v_cmp_gt_u32 vcc, 2, v6
    s_and_saveexec_b64 s[{sEX}:{sEX+1}], vcc
    buffer_store_dwordx2 v[36:37], v9, s[{S_WS}:{S_WS+3}], s{sQA} offen sc1
    s_mov_b64 exec, s[{sEX}:{sEX+1}]
    """)
    a.label("a1_done")
    a("s_waitcnt vmcnt(0)")
    a("s_barrier")
    stamp(a, R, "pre1")
    signal(a, 0)
    a("s_barrier")
    stamp(a, R, "sig1")
    skip_if_wave_ge(a, 8, "a_nowuv")
    a(f"""
    v_lshlrev_b32 v8, 13, v7
    v_lshl_add_u32 v8, v6, 4, v8
    s_lshl_b32 s{sT0}, s{sJ}, 20
    s_lshl_b32 s{sT1}, s{sH}, 8
    s_add_u32 s{sT0}, s{sT0}, s{sT1}
    s_lshl_b32 s{sT1}, s{sWAVE}, 17
    s_add_u32 s{sT0}, s{sT0}, s{sT1}
    s_lshl_b32 s{sT1}, s{sWAVE}, 12
    """)
    for u in range(4):
        a(f"s_mov_b32 m0, s{sT1}")
        a(f"s_add_u32 s{sT1}, s{sT1}, 1024")
        a(f"buffer_load_dwordx4 v8, s[{S_WUV}:{S_WUV+3}], s{sT0} offen nt lds")
        a(f"s_add_u32 s{sT0}, s{sT0}, 32768")
    a.label("a_nowuv")
    a(f"""
    v_lshlrev_b32 v8, 4, v1
    s_mul_i32 s{sT0}, s{sH}, 147456
    s_mul_i32 s{sT1}, s{sWAVE}, 12288
    s_add_u32 s{sT1}, s{sT1}, 36864
    s_add_u32 s{sT0}, s{sT0}, s{sT1}
    """)
    for u in range(12):
        a(f"s_mov_b32 m0, s{sT1}")
        a(f"s_add_u32 s{sT1}, s{sT1}, 1024")
        a(f"buffer_load_dwordx4 v8, s[{S_WO}:{S_WO+3}], s{sT0} offen {WOPOL} lds")
        a(f"s_add_u32 s{sT0}, s{sT0}, 1024")
    a("s_waitcnt vmcnt(12)")
    a("s_barrier")
    a(f"""
    v_lshrrev_b32 v2, 2, v6
    v_lshl_add_u32 v2, v7, 3, v2
    v_and_b32 v3, 3, v1
    v_lshlrev_b32 v3, 3, v3
    """)
    skip_if_wave_ge(a, 8, "a_nowuv2")
    a(f"""
    v_lshl_add_u32 v4, v2, 8, v3
    s_lshl_b32 s{sT1}, s{sWAVE}, 5
    v_add_u32 v4, s{sT1}, v4
    """)
    for ks in range(4):
        for t in range(2):
            a(f"ds_read_b64_tr_b16 v[{48+4*ks+2*t}:{48+4*ks+2*t+1}], v4 offset:{(ks*32+4*t)*256}")
    a("s_waitcnt lgkmcnt(0)")
    a.label("a_nowuv2")
    a("s_barrier")
    a(f"""
    s_mul_i32 s{sT0}, s{sH}, 147456
    s_lshl_b32 s{sT1}, s{sWAVE}, 12
    s_add_u32 s{sT0}, s{sT0}, s{sT1}
    """)
    for u in range(4):
        a(f"s_mov_b32 m0, s{sT1}")
        a(f"s_add_u32 s{sT1}, s{sT1}, 1024")
        a(f"buffer_load_dwordx4 v8, s[{S_WO}:{S_WO+3}], s{sT0} offen {WOPOL} lds")
        a(f"s_add_u32 s{sT0}, s{sT0}, 1024")
    a(f"""
    v_mul_u32_u24 v4, 1152, v2
    v_add_u32 v4, v4, v3
    s_lshl_b32 s{sT1}, s{sWAVE}, 7
    v_add_u32 v4, s{sT1}, v4
    v_add_u32 v9, {64*1152}, v4
    s_waitcnt vmcnt(0)
    s_barrier
    """)
    for nt in range(4):
        for ks in range(4):
            for t in range(2):
                r = 64 + 16 * nt + 4 * ks + 2 * t
                base = 4 if ks < 2 else 9
                off = ((ks & 1) * 32 + 4 * t) * 1152 + nt * 32
                a(f"ds_read_b64_tr_b16 v[{r}:{r+1}], v{base} offset:{off}")
        a("s_waitcnt lgkmcnt(0)")
    a("s_barrier")
    stamp(a, R, "ffn")
    poll(a, 1)
    stamp(a, R, "e2")
    L3_CC = LA_SM
    L3_PC = LA_SM + 512
    L3_P1 = LA_R1
    skip_if_wave_ge(a, 8, "p3_s1skip")
    a(f"""
    v_lshrrev_b32 v4, 4, v5
    v_lshlrev_b32 v4, 21, v4
    v_and_b32 v12, 15, v5
    v_lshl_add_u32 v4, v12, 12, v4
    v_lshl_add_u32 v4, v6, 4, v4
    s_lshl_b32 s{sT0}, s{sH}, 16
    s_lshl_b32 s{sT1}, s{sJ}, 8
    s_add_u32 s{sT0}, s{sT0}, s{sT1}
    s_add_u32 s{sT0}, s{sT0}, {WS_OP}
    v_lshlrev_b32 v3, 3, v1
    s_lshr_b32 s{sT1}, s{sWAVE}, 2
    s_lshl_b32 s{sT1}, s{sT1}, 5
    s_add_u32 s{sT1}, s{sT1}, s{sH}
    s_lshl_b32 s{sT1}, s{sT1}, 9
    s_add_u32 s{sT1}, s{sT1}, {WS_ML}
    buffer_load_dwordx2 v[32:33], v3, s[{S_WS}:{S_WS+3}], s{sT1} offen sc1
    """)
    for u in range(4):
        a(f"buffer_load_dwordx4 v[{16+4*u}:{19+4*u}], v4, s[{S_WS}:{S_WS+3}], s{sT0} offen offset:{u*1024} sc1")
    a(f"""
    v_lshlrev_b32 v12, 4, v12
    s_waitcnt vmcnt(4)
    v_mov_b32 v36, v32
    """)
    wave_reduce(a, "v_max_f32", 36, 37)
    a("""
    v_sub_f32 v32, v32, v36
    v_exp_f32 v32, v32
    s_nop 0
    v_mul_f32 v36, v32, v33
    """)
    wave_reduce(a, "v_add_f32", 36, 37)
    a(f"""
    v_rcp_f32 v36, v36
    s_nop 0
    v_mul_f32 v36, v32, v36
    ds_bpermute_b32 v32, v12, v36
    ds_bpermute_b32 v33, v12, v36 offset:4
    ds_bpermute_b32 v34, v12, v36 offset:8
    ds_bpermute_b32 v35, v12, v36 offset:12
    s_waitcnt vmcnt(0) lgkmcnt(0)
    """)
    for u in range(4):
        for q in range(4):
            a(f"v_lshlrev_b32 v36, 16, v{16+4*u+q}")
            a(f"v_and_b32 v37, 0xffff0000, v{16+4*u+q}")
            if u == 0:
                a(f"v_mul_f32 v{40+2*q}, v32, v36")
                a(f"v_mul_f32 v{41+2*q}, v32, v37")
            else:
                a(f"v_fmac_f32 v{40+2*q}, v{32+u}, v36")
                a(f"v_fmac_f32 v{41+2*q}, v{32+u}, v37")
    a(f"""
    v_lshlrev_b32 v4, 9, v5
    v_lshl_add_u32 v4, v6, 5, v4
    ds_write_b128 v4, v[40:43] offset:{L3_P1}
    ds_write_b128 v4, v[44:47] offset:{L3_P1+16}
    s_waitcnt lgkmcnt(0)
    """)
    a.label("p3_s1skip")
    a("s_barrier")
    stamp(a, R, "s1")
    skip_if_wave_ge(a, 4, "p3_r1skip")
    a(f"""
    v_and_b32 v4, 127, v0
    v_lshlrev_b32 v4, 2, v4
    v_lshrrev_b32 v12, 7, v0
    v_lshl_add_u32 v4, v12, 13, v4
    """)
    for g in range(16):
        a(f"ds_read_b32 v{16+g}, v4 offset:{L3_P1+g*512}")
    a("s_waitcnt lgkmcnt(0)")
    sum_tree(a, range(16, 32))
    a(f"""
    v_cvt_pk_bf16_f32 v16, v16, v16
    v_lshlrev_b32 v4, 1, v0
    ds_write_b16 v4, v16 offset:{L3_CC}
    s_waitcnt lgkmcnt(0)
    """)
    a.label("p3_r1skip")
    a(f"""
    v_lshlrev_b32 v8, 8, v6
    v_lshl_add_u32 v8, v7, 4, v8
    """)
    for i in range(20):
        a(f"v_mov_b32 v{16+i}, 0")
    a("s_barrier")
    stamp(a, R, "r1")
    skip_if_wave_ge(a, 8, "p3_s2skip")
    a(f"""
    v_cmp_gt_u32 vcc, 2, v6
    s_and_saveexec_b64 s[{sEX}:{sEX+1}], vcc
    ds_read_b128 v[16:19], v8 offset:{L3_CC}
    ds_read_b128 v[20:23], v8 offset:{L3_CC+64}
    ds_read_b128 v[24:27], v8 offset:{L3_CC+128}
    ds_read_b128 v[28:31], v8 offset:{L3_CC+192}
    s_mov_b64 exec, s[{sEX}:{sEX+1}]
    s_waitcnt lgkmcnt(0)
    s_nop 4
    v_mfma_f32_16x16x32_bf16 v[32:35], v[16:19], v[48:51], v[32:35]
    v_mfma_f32_16x16x32_bf16 v[32:35], v[20:23], v[52:55], v[32:35]
    v_mfma_f32_16x16x32_bf16 v[32:35], v[24:27], v[56:59], v[32:35]
    v_mfma_f32_16x16x32_bf16 v[32:35], v[28:31], v[60:63], v[32:35]
    s_lshl_b32 s{sT1}, s{sWAVE}, 5
    v_lshlrev_b32 v4, 1, v1
    v_add_u32 v4, s{sT1}, v4
    s_nop 6
    v_cvt_pk_bf16_f32 v36, v32, v33
    v_cmp_gt_u32 vcc, 16, v1
    s_and_saveexec_b64 s[{sEX}:{sEX+1}], vcc
    ds_write_b16 v4, v36 offset:{L3_PC}
    ds_write_b16_d16_hi v4, v36 offset:{L3_PC+256}
    s_mov_b64 exec, s[{sEX}:{sEX+1}]
    s_waitcnt lgkmcnt(0)
    """)
    a.label("p3_s2skip")
    for i in range(16):
        a(f"v_mov_b32 v{16+i}, 0")
    for i in range(16):
        a(f"v_mov_b32 v{32+i}, 0")
    a("s_barrier")
    stamp(a, R, "s2")
    a(f"""
    v_cmp_gt_u32 vcc, 2, v6
    s_and_saveexec_b64 s[{sEX}:{sEX+1}], vcc
    ds_read_b128 v[16:19], v8 offset:{L3_PC}
    ds_read_b128 v[20:23], v8 offset:{L3_PC+64}
    ds_read_b128 v[24:27], v8 offset:{L3_PC+128}
    ds_read_b128 v[28:31], v8 offset:{L3_PC+192}
    s_mov_b64 exec, s[{sEX}:{sEX+1}]
    s_waitcnt lgkmcnt(0)
    s_nop 4
    """)
    for ks in range(4):
        for nt in range(4):
            r = 64 + 16 * nt + 4 * ks
            a(f"v_mfma_f32_16x16x32_bf16 v[{32+4*nt}:{35+4*nt}], v[{r}:{r+3}], v[{16+4*ks}:{19+4*ks}], v[{32+4*nt}:{35+4*nt}]")
    a(f"""
    v_mul_u32_u24 v4, 2304, v6
    v_lshl_add_u32 v4, v7, 4, v4
    s_lshl_b32 s{sT1}, s{sWAVE}, 8
    v_add_u32 v4, s{sT1}, v4
    s_mul_i32 s{sT0}, s2, 9216
    s_add_u32 s{sT0}, s{sT0}, {WS_AP}
    v_cmp_gt_u32 vcc, 2, v6
    v_lshlrev_b32 v3, 3, v0
    v_lshlrev_b32 v2, 4, v0
    v_mov_b32 v17, s{sNONCE}
    v_mov_b32 v19, s{sNONCE}
    s_and_saveexec_b64 s[{sEX}:{sEX+1}], vcc
    ds_write_b128 v4, v[32:35] offset:{LA_R1}
    ds_write_b128 v4, v[36:39] offset:{LA_R1+64}
    ds_write_b128 v4, v[40:43] offset:{LA_R1+128}
    ds_write_b128 v4, v[44:47] offset:{LA_R1+192}
    s_mov_b64 exec, s[{sEX}:{sEX+1}]
    s_waitcnt lgkmcnt(0)
    s_barrier
    ds_read_b64 v[20:21], v3 offset:{LA_R1}
    s_waitcnt lgkmcnt(0)
    v_mov_b32 v16, v20
    v_mov_b32 v18, v21
    buffer_store_dwordx4 v[16:19], v2, s[{S_WS}:{S_WS+3}], s{sT0} offen sc1
    """)
    stamp(a, R, "s3")
    stamp(a, R, "pre3")
    stamp(a, R, "sig3")
    stamp_dump(a)
    a("s_endpgm")


def ffn_prefetch(a, part):
    l = a.uniq("ffnp")
    if part == 0:
        a(f"""
        s_sub_u32 s{sF}, s{sT3}, 36
        v_mul_u32_u24 v10, 911, v0
        v_lshrrev_b32 v10, 16, v10
        v_mul_u32_u24 v11, 72, v10
        v_sub_u32 v11, v0, v11
        """)
    a(f"""
    s_cmp_ge_u32 s{sF}, 72
    s_cbranch_scc1 {l}
    """)
    if part < 2:
        a(f"""
        v_lshrrev_b32 v5, 3, v0
        v_and_b32 v6, 7, v0
        v_mov_b32 v4, 73728
        v_mul_lo_u32 v4, v5, v4
        v_lshl_add_u32 v4, v6, 4, v4
        s_lshl_b32 s{sT2}, s{sF}, 7
        s_add_u32 s{sT2}, s{sT2}, {part*4*9216}
        """)
        for i in range(4):
            r = 104 + 16 * part + 4 * i
            a(f"buffer_load_dwordx4 v[{r}:{r+3}], v4, s[{S_W1}:{S_W1+3}], s{sT2} offen nt")
            if i < 3:
                a(f"s_add_u32 s{sT2}, s{sT2}, 9216")
    else:
        a(f"""
        v_mul_u32_u24 v4, 9216, v10
        v_lshl_add_u32 v4, v11, 4, v4
        s_mul_i32 s{sT2}, s{sF}, 73728
        s_add_u32 s{sT2}, s{sT2}, {(part-2)*4608}
        """)
        for u in range(4):
            r = 136 + 16 * (part - 2) + 4 * u
            a(f"buffer_load_dwordx4 v[{r}:{r+3}], v4, s[{S_W2}:{S_W2+3}], s{sT2} offen offset:{u*1152} nt")
    a.label(l)


def ffn_b(a):
    a(f"""
    s_cmp_ge_u32 s{sF}, 72
    s_cbranch_scc1 ffn_done
    v_lshrrev_b32 v2, 3, v0
    v_and_b32 v3, 7, v0
    v_lshlrev_b32 v4, 4, v2
    buffer_load_dwordx4 v[88:91], v4, s[{S_X}:{S_X+3}], 0 offen
    buffer_load_dwordx4 v[92:95], v4, s[{S_X}:{S_X+3}], 0 offen offset:1152
    v_lshlrev_b32 v9, 1, v1
    s_lshl_b32 s{sT0}, s{sF}, 7
    buffer_load_ushort v12, v9, s[{S_B1}:{S_B1+3}], s{sT0} offen
    """)
    for i in range(16):
        a(f"v_mov_b32 v{16+i}, 0")
    a("s_waitcnt vmcnt(0)")
    dot_rows(a, 104, 8, [88, 92], [16, 24], 14)
    a(f"""
    s_nop 3
    v_lshlrev_b32 v4, 9, v2
    v_lshl_add_u32 v4, v3, 5, v4
    ds_write_b128 v4, v[16:19] offset:{LA_R1}
    ds_write_b128 v4, v[20:23] offset:{LA_R1+16}
    ds_write_b128 v4, v[24:27] offset:{LA_R1+256}
    ds_write_b128 v4, v[28:31] offset:{LA_R1+272}
    s_waitcnt lgkmcnt(0)
    s_barrier
    """)
    skip_if_wave_ge(a, 2, "ffn_skip_red")
    a("v_lshlrev_b32 v4, 2, v0")
    regs = list(range(16, 88))
    for g in range(72):
        a(f"ds_read_b32 v{regs[g]}, v4 offset:{LA_R1+g*512}")
    a("s_waitcnt lgkmcnt(0)")
    sum_tree(a, regs)
    round_bf16(a, 16)
    a("""
    v_lshlrev_b32 v12, 16, v12
    v_add_f32 v16, v16, v12
    """)
    round_bf16(a, 16)
    a(f"""
    v_max_f32 v16, 0, v16
    v_mul_f32 v16, v16, v16
    v_cvt_pk_bf16_f32 v16, v16, v16
    v_lshlrev_b32 v4, 1, v0
    ds_write_b16 v4, v16 offset:{LA_SM}
    s_waitcnt lgkmcnt(0)
    """)
    a.label("ffn_skip_red")
    a(f"""
    s_barrier
    v_lshlrev_b32 v4, 4, v10
    ds_read_b128 v[88:91], v4 offset:{LA_SM}
    ds_read_b128 v[92:95], v4 offset:{LA_SM+128}
    """)
    for i in range(16):
        a(f"v_mov_b32 v{16+i}, 0")
    a("s_waitcnt lgkmcnt(0)")
    dot_rows(a, 136, 8, [88, 92], [16, 24], 14)
    a(f"""
    s_nop 3
    v_mul_u32_u24 v4, 4608, v10
    v_lshl_add_u32 v4, v11, 5, v4
    ds_write_b128 v4, v[16:19] offset:{LA_R1}
    ds_write_b128 v4, v[20:23] offset:{LA_R1+16}
    ds_write_b128 v4, v[24:27] offset:{LA_R1+2304}
    ds_write_b128 v4, v[28:31] offset:{LA_R1+2320}
    s_waitcnt lgkmcnt(0)
    s_barrier
    v_lshlrev_b32 v4, 4, v0
    v_cmp_gt_u32 vcc, 288, v0
    s_and_saveexec_b64 s[{sEX}:{sEX+1}], vcc
    s_cbranch_execz ffn_st_skip
    """)
    for r in range(8):
        a(f"ds_read_b128 v[{16+4*r}:{19+4*r}], v4 offset:{LA_R1+r*4608}")
    a("s_waitcnt lgkmcnt(0)")
    for k in range(4):
        sum_tree(a, [16 + 4 * r + k for r in range(8)])
    a(f"""
    s_mul_i32 s{sT0}, s{sF}, 4608
    s_add_u32 s{sT0}, s{sT0}, {WS_FFNP}
    buffer_store_dwordx4 v[16:19], v4, s[{S_WS}:{S_WS+3}], s{sT0} offen sc1
    """)
    a.label("ffn_st_skip")
    a(f"""
    s_mov_b64 exec, s[{sEX}:{sEX+1}]
    s_waitcnt vmcnt(0)
    s_barrier
    """)
    a.label("ffn_done")
    signal(a, 4)


def role_b(a):
    R = "B"
    a(f"""
    s_sub_u32 s{sT3}, s2, 128
    s_lshr_b32 s{sB}, s{sT3}, 6
    s_and_b32 s{sSPLIT}, s{sT3}, 63
    s_mov_b32 s{sIDX}, s{sT3}
    v_lshlrev_b32 v8, 4, v1
    v_mov_b32 v12, -1
    v_mov_b32 v13, -1
    v_mov_b32 v14, -1
    v_mov_b32 v15, -1
    s_cmp_lg_u32 s{sWAVE}, 8
    s_cbranch_scc1 b_dma
    v_lshlrev_b32 v28, 9, v1
    v_and_b32 v28, 0x3fff, v28
    s_lshl_b32 s{sT0}, s{sB}, 14
    s_lshl_b32 s{sT1}, s{sSPLIT}, 3
    s_add_u32 s{sT0}, s{sT0}, s{sT1}
    s_add_u32 s{sT0}, s{sT0}, {WS_ML}
    v_mov_b32 v14, 0
    """)
    nonce_wait(a, False)
    if BDELAY == "none":
        a("s_branch b_nodma")
        a.label("b_dma")
    else:
        a.label("b_dma")
        if BDELAY == "flag":
            poll(a, 3)
        else:
            a("s_barrier")
        skip_if_wave_ge(a, 8, "b_nodma")
    a(f"""
    s_lshl_b32 s{sT0}, s{sB}, 5
    s_lshl_b32 s{sT1}, s{sWAVE}, 2
    s_add_u32 s{sT0}, s{sT0}, s{sT1}
    s_lshl_b32 s{sT0}, s{sT0}, 6
    s_add_u32 s{sT0}, s{sT0}, s{sSPLIT}
    s_lshl_b32 s{sT0}, s{sT0}, 10
    s_add_u32 s{sT0}, s{sT0}, {WS_OP}
    """)
    a(f"""
    s_lshl_b32 s{sT0}, s{sT3}, 17
    s_lshl_b32 s{sT1}, s{sWAVE}, 14
    s_add_u32 s{sT0}, s{sT0}, s{sT1}
    """)
    for r in range(16):
        a(f"v_xor_b32 v{16+r}, {r*16}, v8")
    for r in range(16):
        a(f"s_mov_b32 m0, s{sT1}")
        a(f"s_add_u32 s{sT1}, s{sT1}, 1024")
        a(f"buffer_load_dwordx4 v{16+r}, s[{S_CKV}:{S_CKV+3}], s{sT0} offen nt lds")
        a(f"s_add_u32 s{sT0}, s{sT0}, 1024")
    a.label("b_nodma")
    stamp(a, R, "dma")
    poll(a, 0)
    stamp(a, R, "e1")
    a(f"""
    v_lshlrev_b32 v4, 4, v0
    s_lshl_b32 s{sT0}, s{sB}, 15
    """)
    skip_if_wave_ge(a, 8, "b_noqa")
    a(f"s_mov_b32 s{sCNT}, 0")
    a.label("e1v_retry")
    a(f"s_mov_b32 s{sT1}, s{sT0}")
    for u in range(4):
        a(f"buffer_load_dwordx4 v[{16+4*u}:{19+4*u}], v4, s[{S_WS}:{S_WS+3}], s{sT1} offen sc1")
        a(f"s_add_u32 s{sT1}, s{sT1}, 8192")
    a("s_waitcnt vmcnt(0)")
    a(f"""
    v_add_u32 v4, {LB_R}, v4
    ds_write_b128 v4, v[16:19]
    ds_write_b128 v4, v[20:23] offset:8192
    ds_write_b128 v4, v[24:27] offset:16384
    ds_write_b128 v4, v[28:31] offset:24576
    s_waitcnt lgkmcnt(0)
    """)
    a.label("b_noqa")
    a("s_barrier")
    ffn_prefetch(a, 0)
    stamp(a, R, "qa")
    skip_if_wave_ge(a, 8, "b_qk_skip")
    a(f"""
    v_and_b32 v2, 15, v1
    v_lshrrev_b32 v7, 4, v1
    s_lshl_b32 s{sT1}, s{sWAVE}, 4
    v_add_u32 v3, s{sT1}, v2
    v_lshlrev_b32 v3, 10, v3
    """)
    for k4 in range(4):
        a(f"v_add_u32 v{12+k4}, {k4*4}, v7")
        a(f"v_xor_b32 v{12+k4}, v{12+k4}, v2")
        a(f"v_lshl_add_u32 v{12+k4}, v{12+k4}, 4, v3")
    a(f"v_add_u32 v9, {LB_R}, v8")
    for i in range(8):
        a(f"v_mov_b32 v{96+i}, 0")
    def qk_reads(grp):
        base = 16 if grp % 2 == 0 else 40
        for k in range(2):
            ks = grp * 2 + k
            a(f"ds_read_b128 v[{base+12*k}:{base+12*k+3}], v{12+(ks&3)} offset:{(ks>>2)*256}")
            a(f"ds_read_b128 v[{base+12*k+4}:{base+12*k+7}], v9 offset:{ks*2048}")
            a(f"ds_read_b128 v[{base+12*k+8}:{base+12*k+11}], v9 offset:{ks*2048+1024}")
    qk_reads(0)
    for grp in range(8):
        if grp < 7:
            qk_reads(grp + 1)
        base = 16 if grp % 2 == 0 else 40
        for k in range(2):
            rem = (6 if grp < 7 else 0) + 3 - 3 * k
            a(f"s_waitcnt lgkmcnt({rem})")
            A_ = base + 12 * k
            a(f"v_mfma_f32_16x16x32_bf16 v[96:99], v[{A_}:{A_+3}], v[{A_+4}:{A_+7}], v[96:99]")
            a(f"v_mfma_f32_16x16x32_bf16 v[100:103], v[{A_}:{A_+3}], v[{A_+8}:{A_+11}], v[100:103]")
        if grp < 6:
            a("s_nop 1")
    a(f"""
    s_nop 7
    s_nop 1
    s_mov_b32 s{sT1}, {f32bits(SCALE_LOG2)}
    """)
    for i in range(8):
        a(f"v_mul_f32 v{96+i}, s{sT1}, v{96+i}")
    a("""
    v_max3_f32 v16, v96, v97, v98
    v_max_f32 v16, v16, v99
    v_max3_f32 v17, v100, v101, v102
    v_max_f32 v17, v17, v103
    """)
    xrow_reduce(a, "v_max_f32", 16, 18)
    xrow_reduce(a, "v_max_f32", 17, 18)
    a.label("b_qk_skip")
    ffn_prefetch(a, 1)
    a("s_barrier")
    stamp(a, R, "qk")
    LB_P = LB_R
    skip_if_wave_ge(a, 8, "b_mx_skip")
    a(f"""
    v_lshlrev_b32 v18, 5, v2
    v_add_u32 v18, {LB_R}, v18
    s_lshl_b32 s{sT1}, s{sWAVE}, 2
    v_add_u32 v19, s{sT1}, v18
    ds_write_b32 v19, v16 offset:8192
    ds_write_b32 v19, v17 offset:{8192+512}
    s_waitcnt lgkmcnt(0)
    """)
    a.label("b_mx_skip")
    ffn_prefetch(a, 2)
    a("s_barrier")
    skip_if_wave_ge(a, 8, "b_sm_skip")
    a(f"""
    ds_read_b128 v[20:23], v18 offset:8192
    ds_read_b128 v[24:27], v18 offset:{8192+16}
    ds_read_b128 v[28:31], v18 offset:{8192+512}
    ds_read_b128 v[32:35], v18 offset:{8192+528}
    s_waitcnt lgkmcnt(0)
    v_max3_f32 v16, v20, v21, v22
    v_max3_f32 v16, v16, v23, v24
    v_max3_f32 v16, v16, v25, v26
    v_max_f32 v16, v16, v27
    v_max3_f32 v17, v28, v29, v30
    v_max3_f32 v17, v17, v31, v32
    v_max3_f32 v17, v17, v33, v34
    v_max_f32 v17, v17, v35
    """)
    for i in range(4):
        a(f"v_sub_f32 v{96+i}, v{96+i}, v16")
        a(f"v_sub_f32 v{100+i}, v{100+i}, v17")
    for i in range(8):
        a(f"v_exp_f32 v{96+i}, v{96+i}")
    a(f"""
    s_nop 0
    v_add_f32 v20, v96, v97
    v_add_f32 v21, v98, v99
    v_add_f32 v20, v20, v21
    v_add_f32 v21, v100, v101
    v_add_f32 v22, v102, v103
    v_add_f32 v21, v21, v22
    v_cvt_pk_bf16_f32 v22, v96, v97
    v_cvt_pk_bf16_f32 v23, v98, v99
    v_cvt_pk_bf16_f32 v24, v100, v101
    v_cvt_pk_bf16_f32 v25, v102, v103
    s_lshl_b32 s{sT1}, s{sWAVE}, 10
    s_add_u32 s{sT1}, s{sT1}, {LB_P}
    v_lshlrev_b32 v26, 4, v2
    v_lshl_add_u32 v26, v7, 1, v26
    v_add_u32 v26, s{sT1}, v26
    ds_write_b16 v26, v22
    ds_write_b16_d16_hi v26, v22 offset:8
    ds_write_b16 v26, v23 offset:512
    ds_write_b16_d16_hi v26, v23 offset:520
    ds_write_b16 v26, v24 offset:256
    ds_write_b16_d16_hi v26, v24 offset:264
    ds_write_b16 v26, v25 offset:768
    ds_write_b16_d16_hi v26, v25 offset:776
    """)
    xrow_reduce(a, "v_add_f32", 20, 27)
    xrow_reduce(a, "v_add_f32", 21, 27)
    a(f"""
    ds_write_b32 v19, v20 offset:9216
    ds_write_b32 v19, v21 offset:{9216+512}
    """)
    for i in range(32):
        a(f"v_mov_b32 v{64+i}, 0")
    a(f"""
    v_lshrrev_b32 v28, 2, v2
    v_lshlrev_b32 v28, 2, v28
    v_lshrrev_b32 v29, 5, v1
    v_lshl_add_u32 v28, v29, 1, v28
    v_and_b32 v29, 1, v7
    v_lshlrev_b32 v29, 1, v29
    v_bfe_u32 v30, v1, 1, 1
    v_add_u32 v29, v29, v30
    s_and_b32 s{sT1}, s{sWAVE}, 1
    s_lshl_b32 s{sT1}, s{sT1}, 3
    v_add_u32 v29, s{sT1}, v29
    v_and_b32 v30, 1, v1
    v_lshlrev_b32 v30, 3, v30
    s_lshr_b32 s{sT1}, s{sWAVE}, 1
    s_lshl_b32 s{sT1}, s{sT1}, 8
    v_add_u32 v30, s{sT1}, v30
    """)
    for nt in range(2):
        for t in range(2):
            d = 12 + 2 * nt + t
            a(f"v_add_u32 v31, {t}, v28")
            a(f"v_add_u32 v32, {4*nt}, v29")
            a(f"v_xor_b32 v32, v32, v31")
            a(f"v_lshl_add_u32 v{d}, v31, 10, v30")
            a(f"v_lshl_add_u32 v{d}, v32, 4, v{d}")
    a(f"""
    v_add_u32 v9, {LB_P}, v8
    s_waitcnt lgkmcnt(0)
    """)
    a.label("b_sm_skip")
    ffn_prefetch(a, 3)
    a("s_barrier")
    stamp(a, R, "sm")
    skip_if_wave_ge(a, 8, "b_pv_skip")
    def breads(ks):
        base = 48 + 8 * (ks & 1)
        if ks == 4:
            for d in range(12, 16):
                a(f"v_add_u32 v{d}, 0x10000, v{d}")
        for nt in range(2):
            for t in range(2):
                a(f"ds_read_b64_tr_b16 v[{base+4*nt+2*t}:{base+4*nt+2*t+1}], v{12+2*nt+t} offset:{(ks&3)*16384}")
    breads(0)
    for ks in range(8):
        a(f"ds_read_b128 v[{16+4*ks}:{19+4*ks}], v9 offset:{ks*1024}")
    breads(1)
    for ks in range(8):
        a(f"s_waitcnt lgkmcnt({4 if ks < 7 else 0})")
        base = 48 + 8 * (ks & 1)
        for nt in range(2):
            a(f"v_mfma_f32_32x32x16_bf16 v[{64+16*nt}:{79+16*nt}], v[{base+4*nt}:{base+4*nt+3}], v[{16+4*ks}:{19+4*ks}], v[{64+16*nt}:{79+16*nt}]")
        if ks + 2 < 8:
            a("s_nop 3")
            breads(ks + 2)
    a("s_nop 7")
    a("s_nop 7")
    for nt in range(2):
        b0_ = 64 + 16 * nt
        for qp in range(2):
            d = 16 + 8 * nt + 4 * qp
            a(f"v_cvt_pk_bf16_f32 v{d}, v{b0_+8*qp}, v{b0_+8*qp+1}")
            a(f"v_cvt_pk_bf16_f32 v{d+1}, v{b0_+8*qp+2}, v{b0_+8*qp+3}")
            a(f"v_cvt_pk_bf16_f32 v{d+2}, v{b0_+8*qp+4}, v{b0_+8*qp+5}")
            a(f"v_cvt_pk_bf16_f32 v{d+3}, v{b0_+8*qp+6}, v{b0_+8*qp+7}")
    a("s_nop 1")
    for nt in range(2):
        for qp in range(2):
            d = 16 + 8 * nt + 4 * qp
            a(f"v_permlane32_swap_b32 v{d}, v{d+2}")
            a(f"v_permlane32_swap_b32 v{d+1}, v{d+3}")
    a.label("b_pv_skip")
    a("s_barrier")
    stamp(a, R, "pv")
    skip_if_wave_ge(a, 8, "b_ow_skip")
    a(f"""
    v_and_b32 v32, 31, v1
    v_mul_u32_u24 v32, {OROW}, v32
    v_lshrrev_b32 v33, 5, v1
    v_lshl_add_u32 v32, v33, 4, v32
    s_lshl_b32 s{sT1}, s{sWAVE}, 7
    v_add_u32 v32, s{sT1}, v32
    ds_write_b128 v32, v[16:19]
    ds_write_b128 v32, v[20:23] offset:32
    ds_write_b128 v32, v[24:27] offset:64
    ds_write_b128 v32, v[28:31] offset:96
    s_waitcnt lgkmcnt(0)
    """)
    a.label("b_ow_skip")
    a("s_barrier")
    skip_if_wave_ge(a, 8, "b_ml")
    a(f"""
    s_mul_i32 s{sT1}, s{sWAVE}, {4*OROW}
    v_add_u32 v29, s{sT1}, v8
    ds_read_b128 v[32:35], v29
    ds_read_b128 v[36:39], v29 offset:{OROW}
    ds_read_b128 v[40:43], v29 offset:{2*OROW}
    ds_read_b128 v[44:47], v29 offset:{3*OROW}
    s_lshl_b32 s{sT0}, s{sB}, 5
    s_lshl_b32 s{sT1}, s{sWAVE}, 2
    s_add_u32 s{sT0}, s{sT0}, s{sT1}
    s_lshl_b32 s{sT0}, s{sT0}, 6
    s_add_u32 s{sT0}, s{sT0}, s{sSPLIT}
    s_lshl_b32 s{sT0}, s{sT0}, 10
    s_add_u32 s{sT0}, s{sT0}, {WS_OP}
    """)
    for u in range(4):
        a(f"s_waitcnt lgkmcnt({3-u})")
        a(f"buffer_store_dwordx4 v[{32+4*u}:{35+4*u}], v8, s[{S_WS}:{S_WS+3}], s{sT0} offen sc1")
        a(f"s_add_u32 s{sT0}, s{sT0}, {64*1024}")
    a("s_branch b_st_done")
    a.label("b_ml")
    a(f"""
    v_lshlrev_b32 v28, 5, v1
    v_add_u32 v28, {LB_R}, v28
    v_cmp_gt_u32 vcc, 32, v1
    s_and_saveexec_b64 s[{sEX}:{sEX+1}], vcc
    ds_read_b128 v[12:15], v28 offset:8192
    ds_read_b128 v[16:19], v28 offset:{8192+16}
    ds_read_b128 v[20:23], v28 offset:9216
    ds_read_b128 v[24:27], v28 offset:{9216+16}
    s_waitcnt lgkmcnt(0)
    v_max3_f32 v12, v12, v13, v14
    v_max3_f32 v12, v12, v15, v16
    v_max3_f32 v12, v12, v17, v18
    v_max_f32 v12, v12, v19
    """)
    sum_tree(a, range(20, 28))
    a(f"""
    v_mov_b32 v13, v20
    v_lshlrev_b32 v28, 9, v1
    s_lshl_b32 s{sT0}, s{sB}, 14
    s_lshl_b32 s{sT1}, s{sSPLIT}, 3
    s_add_u32 s{sT0}, s{sT0}, s{sT1}
    s_add_u32 s{sT0}, s{sT0}, {WS_ML}
    buffer_store_dwordx2 v[12:13], v28, s[{S_WS}:{S_WS+3}], s{sT0} offen sc1
    s_mov_b64 exec, s[{sEX}:{sEX+1}]
    """)
    a.label("b_st_done")
    a("s_waitcnt vmcnt(0)")
    a("s_barrier")
    stamp(a, R, "pre2")
    signal(a, 1)
    a("s_barrier")
    stamp(a, R, "sig2")
    ffn_b(a)
    stamp(a, R, "ffn")
    if STAMP:
        a(f"s_cmp_ge_u32 s{sT3}, 36")
        a("s_cbranch_scc0 b_p4")
        stamp_dump(a)
        a("s_endpgm")
        a.label("b_p4")
    else:
        a(f"""
        s_cmp_ge_u32 s{sT3}, 36
        s_cbranch_scc1 k_end
        """)
    LP_SM = 65536 - 256
    a(f"""
    s_cmp_ge_u32 s{sT3}, 18
    s_cselect_b32 s{sB}, 1, 0
    s_mul_i32 s{sJ}, s{sB}, 18
    s_sub_u32 s{sJ}, s{sT3}, s{sJ}
    s_cmp_lg_u32 s{sWAVE}, 4
    s_cbranch_scc1 p4_nogate
    v_mov_b32 v60, 0
    v_lshlrev_b32 v4, 5, v1
    s_mul_i32 s{sT0}, s{sB}, 1152
    v_cmp_gt_u32 vcc, 36, v1
    s_and_saveexec_b64 s[{sEX}:{sEX+1}], vcc
    buffer_load_dwordx4 v[64:67], v4, s[{S_X}:{S_X+3}], s{sT0} offen
    buffer_load_dwordx4 v[68:71], v4, s[{S_X}:{S_X+3}], s{sT0} offen offset:16
    buffer_load_dwordx4 v[72:75], v4, s[{S_GATE}:{S_GATE+3}], 0 offen
    buffer_load_dwordx4 v[76:79], v4, s[{S_GATE}:{S_GATE+3}], 0 offen offset:16
    s_waitcnt vmcnt(0)
    """)
    for q in range(8):
        a(f"v_lshlrev_b32 v61, 16, v{64+q}")
        a(f"v_lshlrev_b32 v62, 16, v{72+q}")
        a(f"v_mul_f32 v61, v61, v62")
        round_bf16(a, 61)
        a(f"v_add_f32 v60, v60, v61")
        a(f"v_and_b32 v61, 0xffff0000, v{64+q}")
        a(f"v_and_b32 v62, 0xffff0000, v{72+q}")
        a(f"v_mul_f32 v61, v61, v62")
        round_bf16(a, 61)
        a(f"v_add_f32 v60, v60, v61")
    a(f"s_mov_b64 exec, s[{sEX}:{sEX+1}]")
    wave_reduce(a, "v_add_f32", 60, 61)
    round_bf16(a, 60)
    a(f"""
    v_mul_f32 v60, {f32bits(-1.4426950408889634)}, v60
    v_exp_f32 v60, v60
    s_nop 0
    v_add_f32 v60, 1.0, v60
    v_rcp_f32 v60, v60
    s_nop 0
    """)
    round_bf16(a, 60)
    a(f"""
    v_mov_b32 v4, 0
    ds_write_b32 v4, v60 offset:{LP_SM}
    s_waitcnt lgkmcnt(0)
    """)
    a.label("p4_nogate")
    a(f"""
    s_cmp_lg_u32 s{sWAVE}, 8
    s_cbranch_scc1 p4_nn
    v_mov_b32 v4, 0
    v_mov_b32 v5, s{sNONCE}
    ds_write_b32 v4, v5 offset:{LP_SM+16}
    s_waitcnt lgkmcnt(0)
    p4_nn:
    """)
    poll(a, 4)
    skip_if_wave_ge(a, 8, "p4_ld_skip")
    a(f"""
    v_mov_b32 v4, 0
    ds_read_b32 v5, v4 offset:{LP_SM+16}
    v_lshrrev_b32 v2, 3, v0
    v_and_b32 v3, 7, v0
    v_mul_u32_u24 v4, 4608, v2
    v_lshl_add_u32 v4, v3, 4, v4
    s_mul_i32 s{sT0}, s{sB}, 2304
    s_lshl_b32 s{sT1}, s{sJ}, 7
    s_add_u32 s{sT0}, s{sT0}, s{sT1}
    """)
    for u in range(2):
        a(f"buffer_load_dwordx4 v[{48+4*u}:{51+4*u}], v4, s[{S_FP}:{S_FP+3}], s{sT0} offen sc1")
        a(f"s_add_u32 s{sT0}, s{sT0}, {64*4608}")
    a(f"""
    v_lshrrev_b32 v6, 4, v0
    v_and_b32 v7, 15, v0
    v_mul_u32_u24 v9, 9216, v6
    v_lshl_add_u32 v9, v7, 4, v9
    s_mul_i32 s{sT0}, s{sB}, 4608
    s_lshl_b32 s{sT1}, s{sJ}, 8
    s_add_u32 s{sT0}, s{sT0}, s{sT1}
    s_add_u32 s{sT0}, s{sT0}, {WS_AP}
    s_mov_b32 s{sCNT}, 0
    s_waitcnt lgkmcnt(0)
    """)
    a.label("e3v_retry")
    a(f"s_mov_b32 s{sT2}, s{sT0}")
    for u in range(4):
        a(f"buffer_load_dwordx4 v[{16+4*u}:{19+4*u}], v9, s[{S_WS}:{S_WS+3}], s{sT2} offen sc1")
        a(f"s_add_u32 s{sT2}, s{sT2}, {32*9216}")
    a("s_waitcnt vmcnt(0)")
    for i in range(8):
        a(f"v_xor_b32 v{17+2*i}, v{17+2*i}, v5")
    a("""
    v_or3_b32 v17, v17, v19, v21
    v_or3_b32 v23, v23, v25, v27
    v_or3_b32 v17, v17, v29, v31
    v_or_b32 v17, v17, v23
    v_cmp_ne_u32 vcc, 0, v17
    """)
    retry_tail(a, "e3v")
    stamp(a, R, "e3")
    a(f"""
    v_add_f32 v16, v16, v20
    v_add_f32 v24, v24, v28
    v_add_f32 v16, v16, v24
    v_add_f32 v18, v18, v22
    v_add_f32 v26, v26, v30
    v_add_f32 v17, v18, v26
    v_add_f32 v48, v48, v52
    v_add_f32 v49, v49, v53
    v_add_f32 v50, v50, v54
    v_add_f32 v51, v51, v55
    v_lshlrev_b32 v4, 8, v6
    v_lshl_add_u32 v4, v7, 3, v4
    ds_write_b64 v4, v[16:17] offset:40960
    v_lshlrev_b32 v4, 7, v2
    v_lshl_add_u32 v4, v3, 4, v4
    ds_write_b128 v4, v[48:51] offset:49152
    s_waitcnt lgkmcnt(0)
    """)
    a.label("p4_ld_skip")
    a(f"""
    s_barrier
    s_cmp_lg_u32 s{sWAVE}, 0
    s_cbranch_scc1 p4_end
    v_and_b32 v4, 31, v1
    v_lshlrev_b32 v4, 2, v4
    v_mov_b32 v3, 0
    """)
    for g in range(32):
        a(f"ds_read_b32 v{16+g}, v4 offset:{40960+g*256}")
    for g in range(64):
        a(f"ds_read_b32 v{64+g}, v4 offset:{49152+g*128}")
    a(f"""
    ds_read_b32 v60, v3 offset:{LP_SM}
    v_and_b32 v7, 31, v1
    v_lshlrev_b32 v7, 1, v7
    s_lshl_b32 s{sT1}, s{sJ}, 6
    buffer_load_ushort v8, v7, s[{S_B2}:{S_B2+3}], s{sT1} offen
    s_waitcnt lgkmcnt(0)
    """)
    sum_tree(a, range(16, 48))
    sum_tree(a, range(64, 128))
    round_bf16(a, 16)
    a("v_mov_b32 v17, v64")
    round_bf16(a, 17)
    a("""
    s_waitcnt vmcnt(0)
    v_lshlrev_b32 v8, 16, v8
    v_add_f32 v17, v17, v8
    """)
    round_bf16(a, 17)
    a("v_mul_f32 v16, v60, v16")
    round_bf16(a, 16)
    a("v_sub_f32 v18, 1.0, v60")
    round_bf16(a, 18)
    a("v_mul_f32 v17, v18, v17")
    round_bf16(a, 17)
    a(f"""
    v_add_f32 v16, v16, v17
    v_cvt_pk_bf16_f32 v16, v16, v16
    s_mul_i32 s{sT0}, s{sB}, 1152
    s_add_u32 s{sT0}, s{sT0}, s{sT1}
    v_cmp_gt_u32 vcc, 32, v1
    s_and_saveexec_b64 s[{sEX}:{sEX+1}], vcc
    buffer_store_short v16, v7, s[{S_OUT}:{S_OUT+3}], s{sT0} offen
    s_mov_b64 exec, s[{sEX}:{sEX+1}]
    """)
    a.label("p4_end")
    stamp(a, R, "end")
    stamp_dump(a)


def gen(a):
    name = NAME + "_kernel"
    a.raw(".text")
    a.raw(f".globl {name}")
    a.raw(".p2align 8")
    a.raw(f".type {name},@function")
    a.label(name)
    a(f"""
    s_cmp_ge_u32 s2, 256
    s_cbranch_scc1 k_end
    s_load_dwordx2 s[{S_X}:{S_X+1}], s[0:1], 0
    s_load_dwordx2 s[{S_CKV}:{S_CKV+1}], s[0:1], 8
    s_load_dwordx2 s[{S_WQ}:{S_WQ+1}], s[0:1], 16
    s_load_dwordx2 s[{S_WUK}:{S_WUK+1}], s[0:1], 24
    s_load_dwordx2 s[{S_WUV}:{S_WUV+1}], s[0:1], 32
    s_load_dwordx2 s[{S_WO}:{S_WO+1}], s[0:1], 40
    s_load_dwordx2 s[{S_W1}:{S_W1+1}], s[0:1], 56
    s_load_dwordx2 s[{S_B1}:{S_B1+1}], s[0:1], 64
    s_load_dwordx2 s[{S_W2}:{S_W2+1}], s[0:1], 72
    s_load_dwordx2 s[{S_B2}:{S_B2+1}], s[0:1], 80
    s_load_dwordx2 s[{S_GATE}:{S_GATE+1}], s[0:1], 88
    s_load_dwordx2 s[{S_OUT}:{S_OUT+1}], s[0:1], 96
    s_load_dwordx2 s[{S_DBG}:{S_DBG+1}], s[0:1], 104
    s_load_dwordx2 s[{S_WS}:{S_WS+1}], s[0:1], 112
    s_load_dwordx2 s[{S_FP}:{S_FP+1}], s[0:1], 112
    """)
    srd(a, S_X, 2304); srd(a, S_CKV, 16777216); srd(a, S_WQ, 4718592); srd(a, S_WUK, 4194304)
    srd(a, S_WUV, 4194304); srd(a, S_WO, 4718592); srd(a, S_W1, 5308416); srd(a, S_B1, 9216)
    srd(a, S_W2, 5308416); srd(a, S_B2, 1152); srd(a, S_GATE, 1152); srd(a, S_OUT, 2304)
    srd(a, S_DBG, 256); srd(a, S_WS, 268435456); srd(a, S_FP, 72 * 4608)
    a(f"""
    s_mov_b32 s{sLO}, 0x05040100
    s_mov_b32 s{sHI}, 0x07060302
    v_readfirstlane_b32 s{sWAVE}, v0
    s_lshr_b32 s{sWAVE}, s{sWAVE}, 6
    v_and_b32 v1, 63, v0
    s_waitcnt lgkmcnt(0)
    s_add_u32 s{S_FP}, s{S_FP}, {WS_FFNP}
    s_addc_u32 s{S_FP+1}, s{S_FP+1}, 0
    """)
    stamp(a, "A", "start");
    if STAMP:
        STAMPS["B"].append("start")
    a(f"""
    s_cmp_ge_u32 s2, 128
    s_cbranch_scc1 role_b
    s_add_u32 s{sT0}, s2, s{sWAVE}
    s_cmp_lg_u32 s{sT0}, 0
    s_cbranch_scc1 a_nonw
    s_memrealtime s[{sTS}:{sTS+1}]
    v_mov_b32 v14, 0
    s_waitcnt lgkmcnt(0)
    s_or_b32 s{sTS}, s{sTS}, 1
    v_mov_b32 v13, s{sTS}
    buffer_store_dword v13, v14, s[{S_DBG}:{S_DBG+3}], 0 offen sc1
    a_nonw:
    """)
    role_a(a)
    a.label("role_b")
    role_b(a)
    a.label("k_end")
    a("s_endpgm")
    a.raw('.section .rodata,"a"')
    a.raw(".p2align 6")
    a.raw(f".amdhsa_kernel {name}")
    a.raw("  .amdhsa_next_free_vgpr 168")
    a.raw("  .amdhsa_next_free_sgpr 102")
    a.raw("  .amdhsa_accum_offset 168")
    a.raw("  .amdhsa_group_segment_fixed_size 0")
    a.raw("  .amdhsa_kernarg_size 120")
    a.raw("  .amdhsa_user_sgpr_count 2")
    a.raw("  .amdhsa_user_sgpr_kernarg_segment_ptr 1")
    a.raw("  .amdhsa_system_sgpr_workgroup_id_x 1")
    a.raw(".end_amdhsa_kernel")


def main():
    out = sys.argv[1] if len(sys.argv) > 1 else f"cdna_kernels/{NAME}.s"
    hdr = open(f"cdna_kernels/{NAME}.s.ref").read().split("\n")
    hdr = [l for l in hdr if l.startswith(";") and "@launch" not in l]
    a = A()
    for l in hdr:
        a.raw(l)
    a.raw(f"; @launch grid=(256,1,1) block=(576,1,1) lds={LDS_TOTAL}")
    a.raw('.amdgcn_target "amdgcn-amd-amdhsa--gfx950"')
    gen(a)
    open(out, "w").write(a.text())
    if STAMP:
        print(STAMPS)


main()
```

```python
import sys, os, struct

NAME = "gated_mix__compressed_kv_cla__dense_activation_squared_relu__decode"
STAMP = int(os.environ.get("STAMP", "0"))
WQPOL = os.environ.get("WQPOL", "nt")
BDELAY = os.environ.get("BDELAY", "nonce")
WOPOL = os.environ.get("WOPOL", "nt")

WS_QA = 0
WS_ML = 0x80000
WS_FFNP = 0x100000
WS_AP = 0x200000
WS_TS = 0x400000
WS_QP = 0xA0000
WS_FL = 0xF0000
WS_OP = 0x1000000

SCALE_LOG2 = (128 ** -0.5) * 1.4426950408889634
SPIN_MAX = 200000


def f32bits(x):
    return struct.unpack("<I", struct.pack("<f", x))[0]


class A:
    def __init__(self):
        self.l = []
        self.n = 0
    def __call__(self, s):
        for line in s.strip("\n").split("\n"):
            if line.strip():
                self.l.append("    " + line.strip())
    def label(self, s):
        self.l.append(s + ":")
    def raw(self, s):
        self.l.append(s)
    def uniq(self, p):
        self.n += 1
        return f"{p}_{self.n}"
    def text(self):
        return "\n".join(self.l) + "\n"


S_X, S_CKV, S_WQ, S_WUK, S_WUV, S_WO, S_W1, S_B1, S_W2, S_B2, S_GATE, S_OUT, S_DBG, S_WS, S_FP = \
    4, 8, 12, 16, 20, 24, 28, 32, 36, 40, 44, 48, 52, 56, 60
sWAVE, sH, sJ, sB, sSPLIT, sLO, sHI, sT0, sT1, sT2, sT3, sF, sCNT = 64, 65, 66, 67, 68, 69, 70, 72, 73, 74, 75, 76, 77
sEX = 78
sTS = 80
sNONCE = 71
sIDX = 3
sQA = 68

LDS_TOTAL = 163840
LA_SM = 0
LA_R1 = 2048
LA_R2 = 40960
LB_C = 0
LB_R = 131072
OROW = 1040


def srd(a, s, size):
    a(f"s_mov_b32 s{s+2}, {size}")
    a(f"s_mov_b32 s{s+3}, 0x00020000")


def dot_rows(a, W, nrows, X, acc, tmp, waits=None):
    for p in range(nrows // 2):
        if waits is not None and waits[p] is not None:
            a(f"s_waitcnt vmcnt({waits[p]})")
        for q in range(4):
            r0 = W + 4 * (2 * p) + q
            r1 = W + 4 * (2 * p + 1) + q
            a(f"v_perm_b32 v{tmp}, v{r1}, v{r0}, s{sLO}")
            a(f"v_perm_b32 v{tmp+1}, v{r1}, v{r0}, s{sHI}")
            for b in range(len(X)):
                a(f"v_dot2c_f32_bf16 v{acc[b]+2*q}, v{tmp}, v{X[b]+p}")
                a(f"v_dot2c_f32_bf16 v{acc[b]+2*q+1}, v{tmp+1}, v{X[b]+p}")


def sum_tree(a, regs):
    regs = list(regs)
    while len(regs) > 1:
        nxt = []
        for i in range(0, len(regs) - 1, 2):
            a(f"v_add_f32 v{regs[i]}, v{regs[i]}, v{regs[i+1]}")
            nxt.append(regs[i])
        if len(regs) % 2:
            nxt.append(regs[-1])
        regs = nxt


def round_bf16(a, v):
    a(f"v_cvt_pk_bf16_f32 v{v}, v{v}, v{v}")
    a(f"v_lshlrev_b32 v{v}, 16, v{v}")


def xrow_reduce(a, op, v, t):
    a(f"v_mov_b32 v{t}, v{v}")
    a("s_nop 1")
    a(f"v_permlane16_swap_b32 v{v}, v{t}")
    a("s_nop 1")
    a(f"{op} v{v}, v{v}, v{t}")
    a(f"v_mov_b32 v{t}, v{v}")
    a("s_nop 1")
    a(f"v_permlane32_swap_b32 v{v}, v{t}")
    a("s_nop 1")
    a(f"{op} v{v}, v{v}, v{t}")


def wave_reduce(a, op, v, t):
    for m in ("quad_perm:[1,0,3,2]", "quad_perm:[2,3,0,1]", "row_half_mirror", "row_mirror"):
        a("s_nop 1")
        a(f"{op}_dpp v{v}, v{v}, v{v} {m} row_mask:0xf bank_mask:0xf")
    xrow_reduce(a, op, v, t)


def skip_if_wave_ge(a, n, label):
    a(f"s_cmp_ge_u32 s{sWAVE}, {n}")
    a(f"s_cbranch_scc1 {label}")


STAMPS = {"A": [], "B": []}
def stamp(a, role, name):
    if not STAMP:
        return
    STAMPS[role].append(name)
    idx = len(STAMPS[role]) - 1
    a(f"s_memrealtime s[{sTS}:{sTS+1}]")
    a(f"s_waitcnt lgkmcnt(0)")
    a(f"s_mov_b32 s{82+idx}, s{sTS}")


DBGDUMP = int(os.environ.get("DBGDUMP", "0"))
def stamp_dump(a):
    if not STAMP:
        return
    if DBGDUMP:
        l = a.uniq("dd")
        a(f"s_cmp_lg_u32 s{sWAVE}, 0")
        a(f"s_cbranch_scc1 {l}")
        a(f"v_mov_b32 v4, 0")
        a(f"s_cmp_lg_u32 s2, 5")
        a(f"s_cbranch_scc1 {l}_b")
        for k, i in enumerate([2, 4, 6, 7, 8, 9, 12]):
            a(f"s_sub_u32 s{sT3}, s{82+i}, s82")
            a(f"v_mov_b32 v2, s{sT3}")
            a(f"buffer_store_dword v2, v4, s[{S_DBG}:{S_DBG+3}], 0 offen offset:{4+4*k}")
        a.label(f"{l}_b")
        a(f"s_cmp_lg_u32 s2, 133")
        a(f"s_cbranch_scc1 {l}")
        for k, i in enumerate([1, 2, 3, 4, 6, 8, 10, 11]):
            a(f"s_sub_u32 s{sT3}, s{82+i}, s82")
            a(f"v_mov_b32 v2, s{sT3}")
            a(f"buffer_store_dword v2, v4, s[{S_DBG}:{S_DBG+3}], 0 offen offset:{32+4*k}")
        a.label(l)
        return
    a(f"v_mov_b32 v4, 0")
    a(f"v_mov_b32 v3, 0")
    a(f"s_mul_i32 s{sT3}, s2, 9")
    a(f"s_add_u32 s{sT3}, s{sT3}, s{sWAVE}")
    a(f"s_lshl_b32 s{sT3}, s{sT3}, 8")
    a(f"s_add_u32 s{sT3}, s{sT3}, {WS_TS}")
    for i in range(19):
        a(f"v_mov_b32 v2, s{82+i}")
        a(f"buffer_store_dwordx2 v[2:3], v4, s[{S_WS}:{S_WS+3}], s{sT3} offen offset:{i*8}")
        a("s_nop 1")


def signal(a, e):
    l = a.uniq("sig")
    a(f"s_cmp_lg_u32 s{sWAVE}, 8")
    a(f"s_cbranch_scc1 {l}")
    a(f"s_lshl_b32 s{sT0}, s{sIDX}, 2")
    a(f"s_add_u32 s{sT0}, s{sT0}, {WS_FL + e*8192}")
    a(f"v_mov_b32 v2, s{sNONCE}")
    a(f"v_lshlrev_b32 v3, 10, v1")
    a(f"v_cmp_gt_u32 vcc, 8, v1")
    a(f"s_and_saveexec_b64 s[{sEX}:{sEX+1}], vcc")
    a(f"buffer_store_dword v2, v3, s[{S_WS}:{S_WS+3}], s{sT0} offen sc1")
    a(f"s_mov_b64 exec, s[{sEX}:{sEX+1}]")
    a.label(l)


def poll(a, e):
    l = a.uniq("poll")
    a(f"s_cmp_lg_u32 s{sWAVE}, 8")
    a(f"s_cbranch_scc1 {l}_done")
    a(f"v_and_b32 v2, 31, v1")
    a(f"v_lshlrev_b32 v2, 4, v2")
    a(f"s_and_b32 s{sT0}, s2, 7")
    a(f"s_lshl_b32 s{sT0}, s{sT0}, 10")
    a(f"s_add_u32 s{sT0}, s{sT0}, {WS_FL + e*8192}")
    a(f"s_mov_b32 s{sCNT}, 0")
    a.label(f"{l}_loop")
    a(f"buffer_load_dwordx4 v[12:15], v2, s[{S_WS}:{S_WS+3}], s{sT0} offen sc1")
    a(f"s_add_u32 s{sCNT}, s{sCNT}, 1")
    a(f"s_waitcnt vmcnt(0)")
    a(f"v_xor_b32 v12, s{sNONCE}, v12")
    a(f"v_xor_b32 v13, s{sNONCE}, v13")
    a(f"v_xor_b32 v14, s{sNONCE}, v14")
    a(f"v_xor_b32 v15, s{sNONCE}, v15")
    a(f"v_or3_b32 v12, v12, v13, v14")
    a(f"v_or_b32 v12, v12, v15")
    a(f"v_cmp_ne_u32 vcc, 0, v12")
    a(f"s_cmp_ge_u32 s{sCNT}, {SPIN_MAX}")
    a(f"s_cbranch_scc1 {l}_done")
    a(f"s_cbranch_vccnz {l}_loop")
    a.label(f"{l}_done")
    a("s_barrier")


def any_sentinel(a, regs, t):
    regs = list(regs)
    a(f"v_max3_u32 v{t}, v{regs[0]}, v{regs[1]}, v{regs[2]}")
    i = 3
    while i + 1 < len(regs):
        a(f"v_max3_u32 v{t}, v{t}, v{regs[i]}, v{regs[i+1]}")
        i += 2
    if i < len(regs):
        a(f"v_max_u32 v{t}, v{t}, v{regs[i]}")
    a(f"v_cmp_eq_u32 vcc, -1, v{t}")


def retry_tail(a, l):
    a(f"s_add_u32 s{sCNT}, s{sCNT}, 1")
    a(f"s_cmp_ge_u32 s{sCNT}, {SPIN_MAX}")
    a(f"s_cbranch_scc1 {l}_ok")
    a(f"s_cbranch_vccnz {l}_retry")
    a.label(f"{l}_ok")


def nonce_wait(a, first_issued):
    l = a.uniq("nw")
    a(f"s_mov_b32 s{sCNT}, 0")
    a(f"v_mov_b32 v14, 0")
    if first_issued:
        a(f"s_branch {l}_chk")
    a.label(f"{l}_loop")
    a(f"buffer_load_dword v13, v14, s[{S_DBG}:{S_DBG+3}], 0 offen sc1")
    a.label(f"{l}_chk")
    a(f"s_add_u32 s{sCNT}, s{sCNT}, 1")
    a(f"s_waitcnt vmcnt(0)")
    a(f"v_readfirstlane_b32 s{sNONCE}, v13")
    a(f"s_cmp_ge_u32 s{sCNT}, {SPIN_MAX}")
    a(f"s_cbranch_scc1 {l}_done")
    a(f"s_cmp_eq_u32 s{sNONCE}, 0")
    a(f"s_cbranch_scc1 {l}_loop")
    a.label(f"{l}_done")


def role_a(a):
    R = "A"
    a(f"""
    s_and_b32 s{sH}, s2, 7
    s_lshr_b32 s{sT0}, s2, 3
    s_and_b32 s{sT0}, s{sT0}, 3
    s_lshl_b32 s{sT0}, s{sT0}, 3
    s_add_u32 s{sH}, s{sH}, s{sT0}
    s_lshr_b32 s{sJ}, s2, 5
    s_mov_b32 s{sIDX}, s2
    v_lshrrev_b32 v5, 4, v0
    v_and_b32 v6, 15, v0
    v_lshrrev_b32 v7, 4, v1
    v_mul_u32_u24 v10, 911, v0
    v_lshrrev_b32 v10, 16, v10
    v_mul_u32_u24 v11, 72, v10
    v_sub_u32 v11, v0, v11
    v_lshlrev_b32 v8, 13, v6
    v_lshl_add_u32 v8, v7, 4, v8
    s_lshl_b32 s{sT0}, s{sJ}, 7
    s_lshl_b32 s{sT1}, s{sWAVE}, 4
    s_add_u32 s{sT0}, s{sT0}, s{sT1}
    s_lshl_b32 s{sT0}, s{sT0}, 13
    s_lshl_b32 s{sT1}, s{sH}, 8
    s_add_u32 s{sT0}, s{sT0}, s{sT1}
    s_cmp_ge_u32 s{sWAVE}, 8
    s_cbranch_scc1 a0_nowuk
    buffer_load_dwordx4 v[48:51], v8, s[{S_WUK}:{S_WUK+3}], s{sT0} offen nt
    buffer_load_dwordx4 v[52:55], v8, s[{S_WUK}:{S_WUK+3}], s{sT0} offen offset:64 nt
    buffer_load_dwordx4 v[56:59], v8, s[{S_WUK}:{S_WUK+3}], s{sT0} offen offset:128 nt
    buffer_load_dwordx4 v[60:63], v8, s[{S_WUK}:{S_WUK+3}], s{sT0} offen offset:192 nt
    a0_nowuk:
    v_lshlrev_b32 v4, 3, v5
    s_mul_i32 s{sT1}, s{sJ}, 288
    v_lshlrev_b32 v3, 15, v5
    v_lshl_add_u32 v3, v6, 4, v3
    s_mul_i32 s{sT0}, s{sJ}, {144*8192}
    s_lshl_b32 s{sT2}, s{sH}, 8
    s_add_u32 s{sT0}, s{sT0}, s{sT2}
    buffer_load_dwordx2 v[128:129], v4, s[{S_X}:{S_X+3}], s{sT1} offen
    buffer_load_dwordx2 v[136:137], v4, s[{S_X}:{S_X+3}], s{sT1} offen offset:1152
    """)
    for i in range(4):
        a(f"buffer_load_dwordx4 v[{64+4*i}:{67+4*i}], v3, s[{S_WQ}:{S_WQ+3}], s{sT0} offen nt")
        if i < 3:
            a(f"s_add_u32 s{sT0}, s{sT0}, 8192")
    a(f"""
    v_mov_b32 v14, 0
    s_cmp_lg_u32 s{sWAVE}, 8
    s_cbranch_scc1 a0_non
    buffer_load_dword v13, v14, s[{S_DBG}:{S_DBG+3}], 0 offen sc1
    a0_non:
    """)
    a(f"""
    s_lshl_b32 s{sQA}, s{sJ}, 2
    s_and_b32 s{sT2}, s{sWAVE}, 7
    s_lshr_b32 s{sT1}, s{sT2}, 1
    s_add_u32 s{sQA}, s{sQA}, s{sT1}
    s_lshl_b32 s{sQA}, s{sQA}, 1
    s_lshr_b32 s{sT1}, s{sH}, 4
    s_add_u32 s{sQA}, s{sQA}, s{sT1}
    s_lshl_b32 s{sQA}, s{sQA}, 6
    s_and_b32 s{sT1}, s{sT2}, 1
    s_lshl_b32 s{sT1}, s{sT1}, 5
    s_add_u32 s{sQA}, s{sQA}, s{sT1}
    s_and_b32 s{sT1}, s{sH}, 15
    s_add_u32 s{sQA}, s{sQA}, s{sT1}
    s_lshl_b32 s{sQA}, s{sQA}, 4
    v_lshlrev_b32 v9, 15, v6
    v_lshrrev_b32 v2, 1, v7
    v_lshl_add_u32 v9, v2, 8, v9
    v_and_b32 v2, 1, v7
    v_lshl_add_u32 v9, v2, 3, v9
    """)
    for i in range(16):
        a(f"v_mov_b32 v{144+i}, 0")
    dot_rows(a, 64, 4, [128, 136], [144, 152], 20, waits=[2, 0])
    stamp(a, R, "dot")
    a(f"""
    s_nop 3
    v_lshlrev_b32 v4, 10, v5
    v_lshl_add_u32 v4, v6, 5, v4
    ds_write_b128 v4, v[144:147] offset:{LA_R1}
    ds_write_b128 v4, v[148:151] offset:{LA_R1+16}
    ds_write_b128 v4, v[152:155] offset:{LA_R1+512}
    ds_write_b128 v4, v[156:159] offset:{LA_R1+528}
    s_cmp_lg_u32 s{sWAVE}, 8
    s_cbranch_scc1 a1_non
    """)
    nonce_wait(a, True)
    a(f"ds_write_b32 v14, v13 offset:{LA_SM+1024}")
    a.label("a1_non")
    a("""
    s_waitcnt lgkmcnt(0)
    s_barrier
    """)
    a(f"""
    v_mov_b32 v14, 0
    ds_read_b32 v13, v14 offset:{LA_SM+1024}
    s_waitcnt lgkmcnt(0)
    v_readfirstlane_b32 s{sNONCE}, v13
    """)
    stamp(a, R, "bar1")
    if BDELAY == "flag":
        signal(a, 3)
    skip_if_wave_ge(a, 4, "a1_skip_red")
    a("v_lshlrev_b32 v4, 2, v0")
    a("v_mov_b32 v14, 0")
    a(f"ds_read_b32 v13, v14 offset:{LA_SM+1024}")
    for g in range(36):
        a(f"ds_read_b32 v{80+g}, v4 offset:{LA_R1+g*1024}")
    a("s_waitcnt lgkmcnt(0)")
    sum_tree(a, range(80, 116))
    a(f"""
    v_mov_b32 v12, v80
    v_lshlrev_b32 v4, 3, v0
    s_lshl_b32 s{sT0}, s{sH}, 13
    s_add_u32 s{sT0}, s{sT0}, {WS_QP}
    s_lshl_b32 s{sT1}, s{sJ}, 11
    s_add_u32 s{sT1}, s{sT1}, s{sT0}
    buffer_store_dwordx2 v[12:13], v4, s[{S_WS}:{S_WS+3}], s{sT1} offen sc1
    s_mov_b32 s{sCNT}, 0
    """)
    stamp(a, R, "pub")
    a.label("qx_retry")
    a(f"""
    buffer_load_dwordx2 v[16:17], v4, s[{S_WS}:{S_WS+3}], s{sT0} offen sc1
    buffer_load_dwordx2 v[18:19], v4, s[{S_WS}:{S_WS+3}], s{sT0} offen offset:2048 sc1
    s_add_u32 s{sT1}, s{sT0}, 4096
    buffer_load_dwordx2 v[20:21], v4, s[{S_WS}:{S_WS+3}], s{sT1} offen sc1
    buffer_load_dwordx2 v[22:23], v4, s[{S_WS}:{S_WS+3}], s{sT1} offen offset:2048 sc1
    s_waitcnt vmcnt(0)
    v_xor_b32 v17, v17, v13
    v_xor_b32 v19, v19, v13
    v_xor_b32 v21, v21, v13
    v_xor_b32 v23, v23, v13
    v_or3_b32 v17, v17, v19, v21
    v_or_b32 v17, v17, v23
    v_cmp_ne_u32 vcc, 0, v17
    """)
    retry_tail(a, "qx")
    a(f"""
    v_add_f32 v16, v16, v18
    v_add_f32 v20, v20, v22
    v_add_f32 v16, v16, v20
    v_cvt_pk_bf16_f32 v16, v16, v16
    v_lshlrev_b32 v4, 1, v0
    ds_write_b16 v4, v16 offset:{LA_SM}
    s_waitcnt lgkmcnt(0)
    """)
    a.label("a1_skip_red")
    a("s_barrier")
    stamp(a, R, "qred")
    skip_if_wave_ge(a, 8, "a1_done")
    for i in range(20):
        a(f"v_mov_b32 v{16+i}, 0")
    a(f"""
    v_lshlrev_b32 v8, 8, v6
    v_lshl_add_u32 v8, v7, 4, v8
    v_cmp_gt_u32 vcc, 2, v6
    s_and_saveexec_b64 s[{sEX}:{sEX+1}], vcc
    ds_read_b128 v[16:19], v8 offset:{LA_SM}
    ds_read_b128 v[20:23], v8 offset:{LA_SM+64}
    ds_read_b128 v[24:27], v8 offset:{LA_SM+128}
    ds_read_b128 v[28:31], v8 offset:{LA_SM+192}
    s_mov_b64 exec, s[{sEX}:{sEX+1}]
    s_waitcnt vmcnt(0) lgkmcnt(0)
    s_nop 4
    v_mfma_f32_16x16x32_bf16 v[32:35], v[48:51], v[16:19], v[32:35]
    v_mfma_f32_16x16x32_bf16 v[32:35], v[52:55], v[20:23], v[32:35]
    v_mfma_f32_16x16x32_bf16 v[32:35], v[56:59], v[24:27], v[32:35]
    v_mfma_f32_16x16x32_bf16 v[32:35], v[60:63], v[28:31], v[32:35]
    s_nop 7
    s_nop 1
    v_cvt_pk_bf16_f32 v36, v32, v33
    v_cvt_pk_bf16_f32 v37, v34, v35
    v_cmp_gt_u32 vcc, 2, v6
    s_and_saveexec_b64 s[{sEX}:{sEX+1}], vcc
    buffer_store_dwordx2 v[36:37], v9, s[{S_WS}:{S_WS+3}], s{sQA} offen sc1
    s_mov_b64 exec, s[{sEX}:{sEX+1}]
    """)
    a.label("a1_done")
    a("s_waitcnt vmcnt(0)")
    a("s_barrier")
    stamp(a, R, "pre1")
    signal(a, 0)
    a("s_barrier")
    stamp(a, R, "sig1")
    skip_if_wave_ge(a, 8, "a_nowuv")
    a(f"""
    v_lshlrev_b32 v8, 13, v7
    v_lshl_add_u32 v8, v6, 4, v8
    s_lshl_b32 s{sT0}, s{sJ}, 20
    s_lshl_b32 s{sT1}, s{sH}, 8
    s_add_u32 s{sT0}, s{sT0}, s{sT1}
    s_lshl_b32 s{sT1}, s{sWAVE}, 17
    s_add_u32 s{sT0}, s{sT0}, s{sT1}
    s_lshl_b32 s{sT1}, s{sWAVE}, 12
    """)
    for u in range(4):
        a(f"s_mov_b32 m0, s{sT1}")
        a(f"s_add_u32 s{sT1}, s{sT1}, 1024")
        a(f"buffer_load_dwordx4 v8, s[{S_WUV}:{S_WUV+3}], s{sT0} offen nt lds")
        a(f"s_add_u32 s{sT0}, s{sT0}, 32768")
    a.label("a_nowuv")
    a(f"""
    v_lshlrev_b32 v8, 4, v1
    s_mul_i32 s{sT0}, s{sH}, 147456
    s_mul_i32 s{sT1}, s{sWAVE}, 12288
    s_add_u32 s{sT1}, s{sT1}, 36864
    s_add_u32 s{sT0}, s{sT0}, s{sT1}
    """)
    for u in range(12):
        a(f"s_mov_b32 m0, s{sT1}")
        a(f"s_add_u32 s{sT1}, s{sT1}, 1024")
        a(f"buffer_load_dwordx4 v8, s[{S_WO}:{S_WO+3}], s{sT0} offen {WOPOL} lds")
        a(f"s_add_u32 s{sT0}, s{sT0}, 1024")
    a("s_waitcnt vmcnt(12)")
    a("s_barrier")
    a(f"""
    v_lshrrev_b32 v2, 2, v6
    v_lshl_add_u32 v2, v7, 3, v2
    v_and_b32 v3, 3, v1
    v_lshlrev_b32 v3, 3, v3
    """)
    skip_if_wave_ge(a, 8, "a_nowuv2")
    a(f"""
    v_lshl_add_u32 v4, v2, 8, v3
    s_lshl_b32 s{sT1}, s{sWAVE}, 5
    v_add_u32 v4, s{sT1}, v4
    """)
    for ks in range(4):
        for t in range(2):
            a(f"ds_read_b64_tr_b16 v[{48+4*ks+2*t}:{48+4*ks+2*t+1}], v4 offset:{(ks*32+4*t)*256}")
    a("s_waitcnt lgkmcnt(0)")
    a.label("a_nowuv2")
    a("s_barrier")
    a(f"""
    s_mul_i32 s{sT0}, s{sH}, 147456
    s_lshl_b32 s{sT1}, s{sWAVE}, 12
    s_add_u32 s{sT0}, s{sT0}, s{sT1}
    """)
    for u in range(4):
        a(f"s_mov_b32 m0, s{sT1}")
        a(f"s_add_u32 s{sT1}, s{sT1}, 1024")
        a(f"buffer_load_dwordx4 v8, s[{S_WO}:{S_WO+3}], s{sT0} offen {WOPOL} lds")
        a(f"s_add_u32 s{sT0}, s{sT0}, 1024")
    a(f"""
    v_mul_u32_u24 v4, 1152, v2
    v_add_u32 v4, v4, v3
    s_lshl_b32 s{sT1}, s{sWAVE}, 7
    v_add_u32 v4, s{sT1}, v4
    v_add_u32 v9, {64*1152}, v4
    s_waitcnt vmcnt(0)
    s_barrier
    """)
    for nt in range(4):
        for ks in range(4):
            for t in range(2):
                r = 64 + 16 * nt + 4 * ks + 2 * t
                base = 4 if ks < 2 else 9
                off = ((ks & 1) * 32 + 4 * t) * 1152 + nt * 32
                a(f"ds_read_b64_tr_b16 v[{r}:{r+1}], v{base} offset:{off}")
        a("s_waitcnt lgkmcnt(0)")
    a("s_barrier")
    stamp(a, R, "ffn")
    poll(a, 1)
    stamp(a, R, "e2")
    L3_CC = LA_SM
    L3_PC = LA_SM + 512
    L3_P1 = LA_R1
    skip_if_wave_ge(a, 8, "p3_s1skip")
    a(f"""
    v_lshrrev_b32 v4, 4, v5
    v_lshlrev_b32 v4, 21, v4
    v_and_b32 v12, 15, v5
    v_lshl_add_u32 v4, v12, 12, v4
    v_lshl_add_u32 v4, v6, 4, v4
    s_lshl_b32 s{sT0}, s{sH}, 16
    s_lshl_b32 s{sT1}, s{sJ}, 8
    s_add_u32 s{sT0}, s{sT0}, s{sT1}
    s_add_u32 s{sT0}, s{sT0}, {WS_OP}
    v_lshlrev_b32 v3, 3, v1
    s_lshr_b32 s{sT1}, s{sWAVE}, 2
    s_lshl_b32 s{sT1}, s{sT1}, 5
    s_add_u32 s{sT1}, s{sT1}, s{sH}
    s_lshl_b32 s{sT1}, s{sT1}, 9
    s_add_u32 s{sT1}, s{sT1}, {WS_ML}
    buffer_load_dwordx2 v[32:33], v3, s[{S_WS}:{S_WS+3}], s{sT1} offen sc1
    """)
    for u in range(4):
        a(f"buffer_load_dwordx4 v[{16+4*u}:{19+4*u}], v4, s[{S_WS}:{S_WS+3}], s{sT0} offen offset:{u*1024} sc1")
    a(f"""
    v_lshlrev_b32 v12, 4, v12
    s_waitcnt vmcnt(4)
    v_mov_b32 v36, v32
    """)
    wave_reduce(a, "v_max_f32", 36, 37)
    a("""
    v_sub_f32 v32, v32, v36
    v_exp_f32 v32, v32
    s_nop 0
    v_mul_f32 v36, v32, v33
    """)
    wave_reduce(a, "v_add_f32", 36, 37)
    a(f"""
    v_rcp_f32 v36, v36
    s_nop 0
    v_mul_f32 v36, v32, v36
    ds_bpermute_b32 v32, v12, v36
    ds_bpermute_b32 v33, v12, v36 offset:4
    ds_bpermute_b32 v34, v12, v36 offset:8
    ds_bpermute_b32 v35, v12, v36 offset:12
    s_waitcnt vmcnt(0) lgkmcnt(0)
    """)
    for u in range(4):
        for q in range(4):
            a(f"v_lshlrev_b32 v36, 16, v{16+4*u+q}")
            a(f"v_and_b32 v37, 0xffff0000, v{16+4*u+q}")
            if u == 0:
                a(f"v_mul_f32 v{40+2*q}, v32, v36")
                a(f"v_mul_f32 v{41+2*q}, v32, v37")
            else:
                a(f"v_fmac_f32 v{40+2*q}, v{32+u}, v36")
                a(f"v_fmac_f32 v{41+2*q}, v{32+u}, v37")
    a(f"""
    v_lshlrev_b32 v4, 9, v5
    v_lshl_add_u32 v4, v6, 5, v4
    ds_write_b128 v4, v[40:43] offset:{L3_P1}
    ds_write_b128 v4, v[44:47] offset:{L3_P1+16}
    s_waitcnt lgkmcnt(0)
    """)
    a.label("p3_s1skip")
    a("s_barrier")
    stamp(a, R, "s1")
    skip_if_wave_ge(a, 4, "p3_r1skip")
    a(f"""
    v_and_b32 v4, 127, v0
    v_lshlrev_b32 v4, 2, v4
    v_lshrrev_b32 v12, 7, v0
    v_lshl_add_u32 v4, v12, 13, v4
    """)
    for g in range(16):
        a(f"ds_read_b32 v{16+g}, v4 offset:{L3_P1+g*512}")
    a("s_waitcnt lgkmcnt(0)")
    sum_tree(a, range(16, 32))
    a(f"""
    v_cvt_pk_bf16_f32 v16, v16, v16
    v_lshlrev_b32 v4, 1, v0
    ds_write_b16 v4, v16 offset:{L3_CC}
    s_waitcnt lgkmcnt(0)
    """)
    a.label("p3_r1skip")
    a(f"""
    v_lshlrev_b32 v8, 8, v6
    v_lshl_add_u32 v8, v7, 4, v8
    """)
    for i in range(20):
        a(f"v_mov_b32 v{16+i}, 0")
    a("s_barrier")
    stamp(a, R, "r1")
    skip_if_wave_ge(a, 8, "p3_s2skip")
    a(f"""
    v_cmp_gt_u32 vcc, 2, v6
    s_and_saveexec_b64 s[{sEX}:{sEX+1}], vcc
    ds_read_b128 v[16:19], v8 offset:{L3_CC}
    ds_read_b128 v[20:23], v8 offset:{L3_CC+64}
    ds_read_b128 v[24:27], v8 offset:{L3_CC+128}
    ds_read_b128 v[28:31], v8 offset:{L3_CC+192}
    s_mov_b64 exec, s[{sEX}:{sEX+1}]
    s_waitcnt lgkmcnt(0)
    s_nop 4
    v_mfma_f32_16x16x32_bf16 v[32:35], v[16:19], v[48:51], v[32:35]
    v_mfma_f32_16x16x32_bf16 v[32:35], v[20:23], v[52:55], v[32:35]
    v_mfma_f32_16x16x32_bf16 v[32:35], v[24:27], v[56:59], v[32:35]
    v_mfma_f32_16x16x32_bf16 v[32:35], v[28:31], v[60:63], v[32:35]
    s_lshl_b32 s{sT1}, s{sWAVE}, 5
    v_lshlrev_b32 v4, 1, v1
    v_add_u32 v4, s{sT1}, v4
    s_nop 6
    v_cvt_pk_bf16_f32 v36, v32, v33
    v_cmp_gt_u32 vcc, 16, v1
    s_and_saveexec_b64 s[{sEX}:{sEX+1}], vcc
    ds_write_b16 v4, v36 offset:{L3_PC}
    ds_write_b16_d16_hi v4, v36 offset:{L3_PC+256}
    s_mov_b64 exec, s[{sEX}:{sEX+1}]
    s_waitcnt lgkmcnt(0)
    """)
    a.label("p3_s2skip")
    for i in range(16):
        a(f"v_mov_b32 v{16+i}, 0")
    for i in range(16):
        a(f"v_mov_b32 v{32+i}, 0")
    a("s_barrier")
    stamp(a, R, "s2")
    a(f"""
    v_cmp_gt_u32 vcc, 2, v6
    s_and_saveexec_b64 s[{sEX}:{sEX+1}], vcc
    ds_read_b128 v[16:19], v8 offset:{L3_PC}
    ds_read_b128 v[20:23], v8 offset:{L3_PC+64}
    ds_read_b128 v[24:27], v8 offset:{L3_PC+128}
    ds_read_b128 v[28:31], v8 offset:{L3_PC+192}
    s_mov_b64 exec, s[{sEX}:{sEX+1}]
    s_waitcnt lgkmcnt(0)
    s_nop 4
    """)
    for ks in range(4):
        for nt in range(4):
            r = 64 + 16 * nt + 4 * ks
            a(f"v_mfma_f32_16x16x32_bf16 v[{32+4*nt}:{35+4*nt}], v[{r}:{r+3}], v[{16+4*ks}:{19+4*ks}], v[{32+4*nt}:{35+4*nt}]")
    a(f"""
    v_mul_u32_u24 v4, 2304, v6
    v_lshl_add_u32 v4, v7, 4, v4
    s_lshl_b32 s{sT1}, s{sWAVE}, 8
    v_add_u32 v4, s{sT1}, v4
    s_mul_i32 s{sT0}, s2, 9216
    s_add_u32 s{sT0}, s{sT0}, {WS_AP}
    v_cmp_gt_u32 vcc, 2, v6
    v_lshlrev_b32 v3, 3, v0
    v_lshlrev_b32 v2, 4, v0
    v_mov_b32 v17, s{sNONCE}
    v_mov_b32 v19, s{sNONCE}
    s_and_saveexec_b64 s[{sEX}:{sEX+1}], vcc
    ds_write_b128 v4, v[32:35] offset:{LA_R1}
    ds_write_b128 v4, v[36:39] offset:{LA_R1+64}
    ds_write_b128 v4, v[40:43] offset:{LA_R1+128}
    ds_write_b128 v4, v[44:47] offset:{LA_R1+192}
    s_mov_b64 exec, s[{sEX}:{sEX+1}]
    s_waitcnt lgkmcnt(0)
    s_barrier
    ds_read_b64 v[20:21], v3 offset:{LA_R1}
    s_waitcnt lgkmcnt(0)
    v_mov_b32 v16, v20
    v_mov_b32 v18, v21
    buffer_store_dwordx4 v[16:19], v2, s[{S_WS}:{S_WS+3}], s{sT0} offen sc1
    """)
    stamp(a, R, "s3")
    stamp(a, R, "pre3")
    stamp(a, R, "sig3")
    stamp_dump(a)
    a("s_endpgm")


def ffn_prefetch(a, part):
    l = a.uniq("ffnp")
    if part == 0:
        a(f"""
        s_sub_u32 s{sF}, s{sT3}, 36
        v_mul_u32_u24 v10, 911, v0
        v_lshrrev_b32 v10, 16, v10
        v_mul_u32_u24 v11, 72, v10
        v_sub_u32 v11, v0, v11
        """)
    a(f"""
    s_cmp_ge_u32 s{sF}, 72
    s_cbranch_scc1 {l}
    """)
    if part < 2:
        a(f"""
        v_lshrrev_b32 v5, 3, v0
        v_and_b32 v6, 7, v0
        v_mov_b32 v4, 73728
        v_mul_lo_u32 v4, v5, v4
        v_lshl_add_u32 v4, v6, 4, v4
        s_lshl_b32 s{sT2}, s{sF}, 7
        s_add_u32 s{sT2}, s{sT2}, {part*4*9216}
        """)
        for i in range(4):
            r = 104 + 16 * part + 4 * i
            a(f"buffer_load_dwordx4 v[{r}:{r+3}], v4, s[{S_W1}:{S_W1+3}], s{sT2} offen nt")
            if i < 3:
                a(f"s_add_u32 s{sT2}, s{sT2}, 9216")
    else:
        a(f"""
        v_mul_u32_u24 v4, 9216, v10
        v_lshl_add_u32 v4, v11, 4, v4
        s_mul_i32 s{sT2}, s{sF}, 73728
        s_add_u32 s{sT2}, s{sT2}, {(part-2)*4608}
        """)
        for u in range(4):
            r = 136 + 16 * (part - 2) + 4 * u
            a(f"buffer_load_dwordx4 v[{r}:{r+3}], v4, s[{S_W2}:{S_W2+3}], s{sT2} offen offset:{u*1152} nt")
    a.label(l)


def ffn_b(a):
    a(f"""
    s_cmp_ge_u32 s{sF}, 72
    s_cbranch_scc1 ffn_done
    v_lshrrev_b32 v2, 3, v0
    v_and_b32 v3, 7, v0
    v_lshlrev_b32 v4, 4, v2
    buffer_load_dwordx4 v[88:91], v4, s[{S_X}:{S_X+3}], 0 offen
    buffer_load_dwordx4 v[92:95], v4, s[{S_X}:{S_X+3}], 0 offen offset:1152
    v_lshlrev_b32 v9, 1, v1
    s_lshl_b32 s{sT0}, s{sF}, 7
    buffer_load_ushort v12, v9, s[{S_B1}:{S_B1+3}], s{sT0} offen
    """)
    for i in range(16):
        a(f"v_mov_b32 v{16+i}, 0")
    a("s_waitcnt vmcnt(0)")
    dot_rows(a, 104, 8, [88, 92], [16, 24], 14)
    a(f"""
    s_nop 3
    v_lshlrev_b32 v4, 9, v2
    v_lshl_add_u32 v4, v3, 5, v4
    ds_write_b128 v4, v[16:19] offset:{LA_R1}
    ds_write_b128 v4, v[20:23] offset:{LA_R1+16}
    ds_write_b128 v4, v[24:27] offset:{LA_R1+256}
    ds_write_b128 v4, v[28:31] offset:{LA_R1+272}
    s_waitcnt lgkmcnt(0)
    s_barrier
    """)
    skip_if_wave_ge(a, 2, "ffn_skip_red")
    a("v_lshlrev_b32 v4, 2, v0")
    regs = list(range(16, 88))
    for g in range(72):
        a(f"ds_read_b32 v{regs[g]}, v4 offset:{LA_R1+g*512}")
    a("s_waitcnt lgkmcnt(0)")
    sum_tree(a, regs)
    round_bf16(a, 16)
    a("""
    v_lshlrev_b32 v12, 16, v12
    v_add_f32 v16, v16, v12
    """)
    round_bf16(a, 16)
    a(f"""
    v_max_f32 v16, 0, v16
    v_mul_f32 v16, v16, v16
    v_cvt_pk_bf16_f32 v16, v16, v16
    v_lshlrev_b32 v4, 1, v0
    ds_write_b16 v4, v16 offset:{LA_SM}
    s_waitcnt lgkmcnt(0)
    """)
    a.label("ffn_skip_red")
    a(f"""
    s_barrier
    v_lshlrev_b32 v4, 4, v10
    ds_read_b128 v[88:91], v4 offset:{LA_SM}
    ds_read_b128 v[92:95], v4 offset:{LA_SM+128}
    """)
    for i in range(16):
        a(f"v_mov_b32 v{16+i}, 0")
    a("s_waitcnt lgkmcnt(0)")
    dot_rows(a, 136, 8, [88, 92], [16, 24], 14)
    a(f"""
    s_nop 3
    v_mul_u32_u24 v4, 4608, v10
    v_lshl_add_u32 v4, v11, 5, v4
    ds_write_b128 v4, v[16:19] offset:{LA_R1}
    ds_write_b128 v4, v[20:23] offset:{LA_R1+16}
    ds_write_b128 v4, v[24:27] offset:{LA_R1+2304}
    ds_write_b128 v4, v[28:31] offset:{LA_R1+2320}
    s_waitcnt lgkmcnt(0)
    s_barrier
    v_lshlrev_b32 v4, 4, v0
    v_cmp_gt_u32 vcc, 288, v0
    s_and_saveexec_b64 s[{sEX}:{sEX+1}], vcc
    s_cbranch_execz ffn_st_skip
    """)
    for r in range(8):
        a(f"ds_read_b128 v[{16+4*r}:{19+4*r}], v4 offset:{LA_R1+r*4608}")
    a("s_waitcnt lgkmcnt(0)")
    for k in range(4):
        sum_tree(a, [16 + 4 * r + k for r in range(8)])
    a(f"""
    s_mul_i32 s{sT0}, s{sF}, 4608
    s_add_u32 s{sT0}, s{sT0}, {WS_FFNP}
    buffer_store_dwordx4 v[16:19], v4, s[{S_WS}:{S_WS+3}], s{sT0} offen sc1
    """)
    a.label("ffn_st_skip")
    a(f"""
    s_mov_b64 exec, s[{sEX}:{sEX+1}]
    s_waitcnt vmcnt(0)
    s_barrier
    """)
    a.label("ffn_done")
    signal(a, 4)


def role_b(a):
    R = "B"
    a(f"""
    s_sub_u32 s{sT3}, s2, 128
    s_lshr_b32 s{sB}, s{sT3}, 6
    s_and_b32 s{sSPLIT}, s{sT3}, 63
    s_mov_b32 s{sIDX}, s{sT3}
    v_lshlrev_b32 v8, 4, v1
    v_mov_b32 v12, -1
    v_mov_b32 v13, -1
    v_mov_b32 v14, -1
    v_mov_b32 v15, -1
    s_cmp_lg_u32 s{sWAVE}, 8
    s_cbranch_scc1 b_dma
    v_lshlrev_b32 v28, 9, v1
    v_and_b32 v28, 0x3fff, v28
    s_lshl_b32 s{sT0}, s{sB}, 14
    s_lshl_b32 s{sT1}, s{sSPLIT}, 3
    s_add_u32 s{sT0}, s{sT0}, s{sT1}
    s_add_u32 s{sT0}, s{sT0}, {WS_ML}
    v_mov_b32 v14, 0
    """)
    nonce_wait(a, False)
    if BDELAY == "none":
        a("s_branch b_nodma")
        a.label("b_dma")
    else:
        a.label("b_dma")
        if BDELAY == "flag":
            poll(a, 3)
        else:
            a("s_barrier")
        skip_if_wave_ge(a, 8, "b_nodma")
    a(f"""
    s_lshl_b32 s{sT0}, s{sB}, 5
    s_lshl_b32 s{sT1}, s{sWAVE}, 2
    s_add_u32 s{sT0}, s{sT0}, s{sT1}
    s_lshl_b32 s{sT0}, s{sT0}, 6
    s_add_u32 s{sT0}, s{sT0}, s{sSPLIT}
    s_lshl_b32 s{sT0}, s{sT0}, 10
    s_add_u32 s{sT0}, s{sT0}, {WS_OP}
    """)
    a(f"""
    s_lshl_b32 s{sT0}, s{sT3}, 17
    s_lshl_b32 s{sT1}, s{sWAVE}, 14
    s_add_u32 s{sT0}, s{sT0}, s{sT1}
    """)
    for r in range(16):
        a(f"v_xor_b32 v{16+r}, {r*16}, v8")
    for r in range(16):
        a(f"s_mov_b32 m0, s{sT1}")
        a(f"s_add_u32 s{sT1}, s{sT1}, 1024")
        a(f"buffer_load_dwordx4 v{16+r}, s[{S_CKV}:{S_CKV+3}], s{sT0} offen nt lds")
        a(f"s_add_u32 s{sT0}, s{sT0}, 1024")
    a.label("b_nodma")
    stamp(a, R, "dma")
    poll(a, 0)
    stamp(a, R, "e1")
    a(f"""
    v_lshlrev_b32 v4, 4, v0
    s_lshl_b32 s{sT0}, s{sB}, 15
    """)
    skip_if_wave_ge(a, 8, "b_noqa")
    a(f"s_mov_b32 s{sCNT}, 0")
    a.label("e1v_retry")
    a(f"s_mov_b32 s{sT1}, s{sT0}")
    for u in range(4):
        a(f"buffer_load_dwordx4 v[{16+4*u}:{19+4*u}], v4, s[{S_WS}:{S_WS+3}], s{sT1} offen sc1")
        a(f"s_add_u32 s{sT1}, s{sT1}, 8192")
    a("s_waitcnt vmcnt(0)")
    a(f"""
    v_add_u32 v4, {LB_R}, v4
    ds_write_b128 v4, v[16:19]
    ds_write_b128 v4, v[20:23] offset:8192
    ds_write_b128 v4, v[24:27] offset:16384
    ds_write_b128 v4, v[28:31] offset:24576
    s_waitcnt lgkmcnt(0)
    """)
    a.label("b_noqa")
    a("s_barrier")
    ffn_prefetch(a, 0)
    stamp(a, R, "qa")
    skip_if_wave_ge(a, 8, "b_qk_skip")
    a(f"""
    v_and_b32 v2, 15, v1
    v_lshrrev_b32 v7, 4, v1
    s_lshl_b32 s{sT1}, s{sWAVE}, 4
    v_add_u32 v3, s{sT1}, v2
    v_lshlrev_b32 v3, 10, v3
    """)
    for k4 in range(4):
        a(f"v_add_u32 v{12+k4}, {k4*4}, v7")
        a(f"v_xor_b32 v{12+k4}, v{12+k4}, v2")
        a(f"v_lshl_add_u32 v{12+k4}, v{12+k4}, 4, v3")
    a(f"v_add_u32 v9, {LB_R}, v8")
    for i in range(8):
        a(f"v_mov_b32 v{96+i}, 0")
    def qk_reads(grp):
        base = 16 if grp % 2 == 0 else 40
        for k in range(2):
            ks = grp * 2 + k
            a(f"ds_read_b128 v[{base+12*k}:{base+12*k+3}], v{12+(ks&3)} offset:{(ks>>2)*256}")
            a(f"ds_read_b128 v[{base+12*k+4}:{base+12*k+7}], v9 offset:{ks*2048}")
            a(f"ds_read_b128 v[{base+12*k+8}:{base+12*k+11}], v9 offset:{ks*2048+1024}")
    qk_reads(0)
    for grp in range(8):
        if grp < 7:
            qk_reads(grp + 1)
        base = 16 if grp % 2 == 0 else 40
        for k in range(2):
            rem = (6 if grp < 7 else 0) + 3 - 3 * k
            a(f"s_waitcnt lgkmcnt({rem})")
            A_ = base + 12 * k
            a(f"v_mfma_f32_16x16x32_bf16 v[96:99], v[{A_}:{A_+3}], v[{A_+4}:{A_+7}], v[96:99]")
            a(f"v_mfma_f32_16x16x32_bf16 v[100:103], v[{A_}:{A_+3}], v[{A_+8}:{A_+11}], v[100:103]")
        if grp < 6:
            a("s_nop 1")
    a(f"""
    s_nop 7
    s_nop 1
    s_mov_b32 s{sT1}, {f32bits(SCALE_LOG2)}
    """)
    for i in range(8):
        a(f"v_mul_f32 v{96+i}, s{sT1}, v{96+i}")
    a("""
    v_max3_f32 v16, v96, v97, v98
    v_max_f32 v16, v16, v99
    v_max3_f32 v17, v100, v101, v102
    v_max_f32 v17, v17, v103
    """)
    xrow_reduce(a, "v_max_f32", 16, 18)
    xrow_reduce(a, "v_max_f32", 17, 18)
    a.label("b_qk_skip")
    ffn_prefetch(a, 1)
    a("s_barrier")
    stamp(a, R, "qk")
    LB_P = LB_R
    skip_if_wave_ge(a, 8, "b_mx_skip")
    a(f"""
    v_lshlrev_b32 v18, 5, v2
    v_add_u32 v18, {LB_R}, v18
    s_lshl_b32 s{sT1}, s{sWAVE}, 2
    v_add_u32 v19, s{sT1}, v18
    ds_write_b32 v19, v16 offset:8192
    ds_write_b32 v19, v17 offset:{8192+512}
    s_waitcnt lgkmcnt(0)
    """)
    a.label("b_mx_skip")
    ffn_prefetch(a, 2)
    a("s_barrier")
    skip_if_wave_ge(a, 8, "b_sm_skip")
    a(f"""
    ds_read_b128 v[20:23], v18 offset:8192
    ds_read_b128 v[24:27], v18 offset:{8192+16}
    ds_read_b128 v[28:31], v18 offset:{8192+512}
    ds_read_b128 v[32:35], v18 offset:{8192+528}
    s_waitcnt lgkmcnt(0)
    v_max3_f32 v16, v20, v21, v22
    v_max3_f32 v16, v16, v23, v24
    v_max3_f32 v16, v16, v25, v26
    v_max_f32 v16, v16, v27
    v_max3_f32 v17, v28, v29, v30
    v_max3_f32 v17, v17, v31, v32
    v_max3_f32 v17, v17, v33, v34
    v_max_f32 v17, v17, v35
    """)
    for i in range(4):
        a(f"v_sub_f32 v{96+i}, v{96+i}, v16")
        a(f"v_sub_f32 v{100+i}, v{100+i}, v17")
    for i in range(8):
        a(f"v_exp_f32 v{96+i}, v{96+i}")
    a(f"""
    s_nop 0
    v_add_f32 v20, v96, v97
    v_add_f32 v21, v98, v99
    v_add_f32 v20, v20, v21
    v_add_f32 v21, v100, v101
    v_add_f32 v22, v102, v103
    v_add_f32 v21, v21, v22
    v_cvt_pk_bf16_f32 v22, v96, v97
    v_cvt_pk_bf16_f32 v23, v98, v99
    v_cvt_pk_bf16_f32 v24, v100, v101
    v_cvt_pk_bf16_f32 v25, v102, v103
    s_lshl_b32 s{sT1}, s{sWAVE}, 10
    s_add_u32 s{sT1}, s{sT1}, {LB_P}
    v_lshlrev_b32 v26, 4, v2
    v_lshl_add_u32 v26, v7, 1, v26
    v_add_u32 v26, s{sT1}, v26
    ds_write_b16 v26, v22
    ds_write_b16_d16_hi v26, v22 offset:8
    ds_write_b16 v26, v23 offset:512
    ds_write_b16_d16_hi v26, v23 offset:520
    ds_write_b16 v26, v24 offset:256
    ds_write_b16_d16_hi v26, v24 offset:264
    ds_write_b16 v26, v25 offset:768
    ds_write_b16_d16_hi v26, v25 offset:776
    """)
    xrow_reduce(a, "v_add_f32", 20, 27)
    xrow_reduce(a, "v_add_f32", 21, 27)
    a(f"""
    ds_write_b32 v19, v20 offset:9216
    ds_write_b32 v19, v21 offset:{9216+512}
    """)
    for i in range(32):
        a(f"v_mov_b32 v{64+i}, 0")
    a(f"""
    v_lshrrev_b32 v28, 2, v2
    v_lshlrev_b32 v28, 2, v28
    v_lshrrev_b32 v29, 5, v1
    v_lshl_add_u32 v28, v29, 1, v28
    v_and_b32 v29, 1, v7
    v_lshlrev_b32 v29, 1, v29
    v_bfe_u32 v30, v1, 1, 1
    v_add_u32 v29, v29, v30
    s_and_b32 s{sT1}, s{sWAVE}, 1
    s_lshl_b32 s{sT1}, s{sT1}, 3
    v_add_u32 v29, s{sT1}, v29
    v_and_b32 v30, 1, v1
    v_lshlrev_b32 v30, 3, v30
    s_lshr_b32 s{sT1}, s{sWAVE}, 1
    s_lshl_b32 s{sT1}, s{sT1}, 8
    v_add_u32 v30, s{sT1}, v30
    """)
    for nt in range(2):
        for t in range(2):
            d = 12 + 2 * nt + t
            a(f"v_add_u32 v31, {t}, v28")
            a(f"v_add_u32 v32, {4*nt}, v29")
            a(f"v_xor_b32 v32, v32, v31")
            a(f"v_lshl_add_u32 v{d}, v31, 10, v30")
            a(f"v_lshl_add_u32 v{d}, v32, 4, v{d}")
    a(f"""
    v_add_u32 v9, {LB_P}, v8
    s_waitcnt lgkmcnt(0)
    """)
    a.label("b_sm_skip")
    ffn_prefetch(a, 3)
    a("s_barrier")
    stamp(a, R, "sm")
    skip_if_wave_ge(a, 8, "b_pv_skip")
    def breads(ks):
        base = 48 + 8 * (ks & 1)
        if ks == 4:
            for d in range(12, 16):
                a(f"v_add_u32 v{d}, 0x10000, v{d}")
        for nt in range(2):
            for t in range(2):
                a(f"ds_read_b64_tr_b16 v[{base+4*nt+2*t}:{base+4*nt+2*t+1}], v{12+2*nt+t} offset:{(ks&3)*16384}")
    breads(0)
    for ks in range(8):
        a(f"ds_read_b128 v[{16+4*ks}:{19+4*ks}], v9 offset:{ks*1024}")
    breads(1)
    for ks in range(8):
        a(f"s_waitcnt lgkmcnt({4 if ks < 7 else 0})")
        base = 48 + 8 * (ks & 1)
        for nt in range(2):
            a(f"v_mfma_f32_32x32x16_bf16 v[{64+16*nt}:{79+16*nt}], v[{base+4*nt}:{base+4*nt+3}], v[{16+4*ks}:{19+4*ks}], v[{64+16*nt}:{79+16*nt}]")
        if ks + 2 < 8:
            a("s_nop 3")
            breads(ks + 2)
    a("s_nop 7")
    a("s_nop 7")
    for nt in range(2):
        b0_ = 64 + 16 * nt
        for qp in range(2):
            d = 16 + 8 * nt + 4 * qp
            a(f"v_cvt_pk_bf16_f32 v{d}, v{b0_+8*qp}, v{b0_+8*qp+1}")
            a(f"v_cvt_pk_bf16_f32 v{d+1}, v{b0_+8*qp+2}, v{b0_+8*qp+3}")
            a(f"v_cvt_pk_bf16_f32 v{d+2}, v{b0_+8*qp+4}, v{b0_+8*qp+5}")
            a(f"v_cvt_pk_bf16_f32 v{d+3}, v{b0_+8*qp+6}, v{b0_+8*qp+7}")
    a("s_nop 1")
    for nt in range(2):
        for qp in range(2):
            d = 16 + 8 * nt + 4 * qp
            a(f"v_permlane32_swap_b32 v{d}, v{d+2}")
            a(f"v_permlane32_swap_b32 v{d+1}, v{d+3}")
    a.label("b_pv_skip")
    a("s_barrier")
    stamp(a, R, "pv")
    skip_if_wave_ge(a, 8, "b_ow_skip")
    a(f"""
    v_and_b32 v32, 31, v1
    v_mul_u32_u24 v32, {OROW}, v32
    v_lshrrev_b32 v33, 5, v1
    v_lshl_add_u32 v32, v33, 4, v32
    s_lshl_b32 s{sT1}, s{sWAVE}, 7
    v_add_u32 v32, s{sT1}, v32
    ds_write_b128 v32, v[16:19]
    ds_write_b128 v32, v[20:23] offset:32
    ds_write_b128 v32, v[24:27] offset:64
    ds_write_b128 v32, v[28:31] offset:96
    s_waitcnt lgkmcnt(0)
    """)
    a.label("b_ow_skip")
    a("s_barrier")
    skip_if_wave_ge(a, 8, "b_ml")
    a(f"""
    s_mul_i32 s{sT1}, s{sWAVE}, {4*OROW}
    v_add_u32 v29, s{sT1}, v8
    ds_read_b128 v[32:35], v29
    ds_read_b128 v[36:39], v29 offset:{OROW}
    ds_read_b128 v[40:43], v29 offset:{2*OROW}
    ds_read_b128 v[44:47], v29 offset:{3*OROW}
    s_lshl_b32 s{sT0}, s{sB}, 5
    s_lshl_b32 s{sT1}, s{sWAVE}, 2
    s_add_u32 s{sT0}, s{sT0}, s{sT1}
    s_lshl_b32 s{sT0}, s{sT0}, 6
    s_add_u32 s{sT0}, s{sT0}, s{sSPLIT}
    s_lshl_b32 s{sT0}, s{sT0}, 10
    s_add_u32 s{sT0}, s{sT0}, {WS_OP}
    """)
    for u in range(4):
        a(f"s_waitcnt lgkmcnt({3-u})")
        a(f"buffer_store_dwordx4 v[{32+4*u}:{35+4*u}], v8, s[{S_WS}:{S_WS+3}], s{sT0} offen sc1")
        a(f"s_add_u32 s{sT0}, s{sT0}, {64*1024}")
    a("s_branch b_st_done")
    a.label("b_ml")
    a(f"""
    v_lshlrev_b32 v28, 5, v1
    v_add_u32 v28, {LB_R}, v28
    v_cmp_gt_u32 vcc, 32, v1
    s_and_saveexec_b64 s[{sEX}:{sEX+1}], vcc
    ds_read_b128 v[12:15], v28 offset:8192
    ds_read_b128 v[16:19], v28 offset:{8192+16}
    ds_read_b128 v[20:23], v28 offset:9216
    ds_read_b128 v[24:27], v28 offset:{9216+16}
    s_waitcnt lgkmcnt(0)
    v_max3_f32 v12, v12, v13, v14
    v_max3_f32 v12, v12, v15, v16
    v_max3_f32 v12, v12, v17, v18
    v_max_f32 v12, v12, v19
    """)
    sum_tree(a, range(20, 28))
    a(f"""
    v_mov_b32 v13, v20
    v_lshlrev_b32 v28, 9, v1
    s_lshl_b32 s{sT0}, s{sB}, 14
    s_lshl_b32 s{sT1}, s{sSPLIT}, 3
    s_add_u32 s{sT0}, s{sT0}, s{sT1}
    s_add_u32 s{sT0}, s{sT0}, {WS_ML}
    buffer_store_dwordx2 v[12:13], v28, s[{S_WS}:{S_WS+3}], s{sT0} offen sc1
    s_mov_b64 exec, s[{sEX}:{sEX+1}]
    """)
    a.label("b_st_done")
    a("s_waitcnt vmcnt(0)")
    a("s_barrier")
    stamp(a, R, "pre2")
    signal(a, 1)
    a("s_barrier")
    stamp(a, R, "sig2")
    ffn_b(a)
    stamp(a, R, "ffn")
    if STAMP:
        a(f"s_cmp_ge_u32 s{sT3}, 36")
        a("s_cbranch_scc0 b_p4")
        stamp_dump(a)
        a("s_endpgm")
        a.label("b_p4")
    else:
        a(f"""
        s_cmp_ge_u32 s{sT3}, 36
        s_cbranch_scc1 k_end
        """)
    LP_SM = 65536 - 256
    a(f"""
    s_cmp_ge_u32 s{sT3}, 18
    s_cselect_b32 s{sB}, 1, 0
    s_mul_i32 s{sJ}, s{sB}, 18
    s_sub_u32 s{sJ}, s{sT3}, s{sJ}
    s_cmp_lg_u32 s{sWAVE}, 4
    s_cbranch_scc1 p4_nogate
    v_mov_b32 v60, 0
    v_lshlrev_b32 v4, 5, v1
    s_mul_i32 s{sT0}, s{sB}, 1152
    v_cmp_gt_u32 vcc, 36, v1
    s_and_saveexec_b64 s[{sEX}:{sEX+1}], vcc
    buffer_load_dwordx4 v[64:67], v4, s[{S_X}:{S_X+3}], s{sT0} offen
    buffer_load_dwordx4 v[68:71], v4, s[{S_X}:{S_X+3}], s{sT0} offen offset:16
    buffer_load_dwordx4 v[72:75], v4, s[{S_GATE}:{S_GATE+3}], 0 offen
    buffer_load_dwordx4 v[76:79], v4, s[{S_GATE}:{S_GATE+3}], 0 offen offset:16
    s_waitcnt vmcnt(0)
    """)
    for q in range(8):
        a(f"v_lshlrev_b32 v61, 16, v{64+q}")
        a(f"v_lshlrev_b32 v62, 16, v{72+q}")
        a(f"v_mul_f32 v61, v61, v62")
        round_bf16(a, 61)
        a(f"v_add_f32 v60, v60, v61")
        a(f"v_and_b32 v61, 0xffff0000, v{64+q}")
        a(f"v_and_b32 v62, 0xffff0000, v{72+q}")
        a(f"v_mul_f32 v61, v61, v62")
        round_bf16(a, 61)
        a(f"v_add_f32 v60, v60, v61")
    a(f"s_mov_b64 exec, s[{sEX}:{sEX+1}]")
    wave_reduce(a, "v_add_f32", 60, 61)
    round_bf16(a, 60)
    a(f"""
    v_mul_f32 v60, {f32bits(-1.4426950408889634)}, v60
    v_exp_f32 v60, v60
    s_nop 0
    v_add_f32 v60, 1.0, v60
    v_rcp_f32 v60, v60
    s_nop 0
    """)
    round_bf16(a, 60)
    a(f"""
    v_mov_b32 v4, 0
    ds_write_b32 v4, v60 offset:{LP_SM}
    s_waitcnt lgkmcnt(0)
    """)
    a.label("p4_nogate")
    a(f"""
    s_cmp_lg_u32 s{sWAVE}, 8
    s_cbranch_scc1 p4_nn
    v_mov_b32 v4, 0
    v_mov_b32 v5, s{sNONCE}
    ds_write_b32 v4, v5 offset:{LP_SM+16}
    s_waitcnt lgkmcnt(0)
    p4_nn:
    """)
    poll(a, 4)
    skip_if_wave_ge(a, 8, "p4_ld_skip")
    a(f"""
    v_mov_b32 v4, 0
    ds_read_b32 v5, v4 offset:{LP_SM+16}
    v_lshrrev_b32 v2, 3, v0
    v_and_b32 v3, 7, v0
    v_mul_u32_u24 v4, 4608, v2
    v_lshl_add_u32 v4, v3, 4, v4
    s_mul_i32 s{sT0}, s{sB}, 2304
    s_lshl_b32 s{sT1}, s{sJ}, 7
    s_add_u32 s{sT0}, s{sT0}, s{sT1}
    """)
    for u in range(2):
        a(f"buffer_load_dwordx4 v[{48+4*u}:{51+4*u}], v4, s[{S_FP}:{S_FP+3}], s{sT0} offen sc1")
        a(f"s_add_u32 s{sT0}, s{sT0}, {64*4608}")
    a(f"""
    v_lshrrev_b32 v6, 4, v0
    v_and_b32 v7, 15, v0
    v_mul_u32_u24 v9, 9216, v6
    v_lshl_add_u32 v9, v7, 4, v9
    s_mul_i32 s{sT0}, s{sB}, 4608
    s_lshl_b32 s{sT1}, s{sJ}, 8
    s_add_u32 s{sT0}, s{sT0}, s{sT1}
    s_add_u32 s{sT0}, s{sT0}, {WS_AP}
    s_mov_b32 s{sCNT}, 0
    s_waitcnt lgkmcnt(0)
    """)
    a.label("e3v_retry")
    a(f"s_mov_b32 s{sT2}, s{sT0}")
    for u in range(4):
        a(f"buffer_load_dwordx4 v[{16+4*u}:{19+4*u}], v9, s[{S_WS}:{S_WS+3}], s{sT2} offen sc1")
        a(f"s_add_u32 s{sT2}, s{sT2}, {32*9216}")
    a("s_waitcnt vmcnt(0)")
    for i in range(8):
        a(f"v_xor_b32 v{17+2*i}, v{17+2*i}, v5")
    a("""
    v_or3_b32 v17, v17, v19, v21
    v_or3_b32 v23, v23, v25, v27
    v_or3_b32 v17, v17, v29, v31
    v_or_b32 v17, v17, v23
    v_cmp_ne_u32 vcc, 0, v17
    """)
    retry_tail(a, "e3v")
    stamp(a, R, "e3")
    a(f"""
    v_add_f32 v16, v16, v20
    v_add_f32 v24, v24, v28
    v_add_f32 v16, v16, v24
    v_add_f32 v18, v18, v22
    v_add_f32 v26, v26, v30
    v_add_f32 v17, v18, v26
    v_add_f32 v48, v48, v52
    v_add_f32 v49, v49, v53
    v_add_f32 v50, v50, v54
    v_add_f32 v51, v51, v55
    v_lshlrev_b32 v4, 8, v6
    v_lshl_add_u32 v4, v7, 3, v4
    ds_write_b64 v4, v[16:17] offset:40960
    v_lshlrev_b32 v4, 7, v2
    v_lshl_add_u32 v4, v3, 4, v4
    ds_write_b128 v4, v[48:51] offset:49152
    s_waitcnt lgkmcnt(0)
    """)
    a.label("p4_ld_skip")
    a(f"""
    s_barrier
    s_cmp_lg_u32 s{sWAVE}, 0
    s_cbranch_scc1 p4_end
    v_and_b32 v4, 31, v1
    v_lshlrev_b32 v4, 2, v4
    v_mov_b32 v3, 0
    """)
    for g in range(32):
        a(f"ds_read_b32 v{16+g}, v4 offset:{40960+g*256}")
    for g in range(64):
        a(f"ds_read_b32 v{64+g}, v4 offset:{49152+g*128}")
    a(f"""
    ds_read_b32 v60, v3 offset:{LP_SM}
    v_and_b32 v7, 31, v1
    v_lshlrev_b32 v7, 1, v7
    s_lshl_b32 s{sT1}, s{sJ}, 6
    buffer_load_ushort v8, v7, s[{S_B2}:{S_B2+3}], s{sT1} offen
    s_waitcnt lgkmcnt(0)
    """)
    sum_tree(a, range(16, 48))
    sum_tree(a, range(64, 128))
    round_bf16(a, 16)
    a("v_mov_b32 v17, v64")
    round_bf16(a, 17)
    a("""
    s_waitcnt vmcnt(0)
    v_lshlrev_b32 v8, 16, v8
    v_add_f32 v17, v17, v8
    """)
    round_bf16(a, 17)
    a("v_mul_f32 v16, v60, v16")
    round_bf16(a, 16)
    a("v_sub_f32 v18, 1.0, v60")
    round_bf16(a, 18)
    a("v_mul_f32 v17, v18, v17")
    round_bf16(a, 17)
    a(f"""
    v_add_f32 v16, v16, v17
    v_cvt_pk_bf16_f32 v16, v16, v16
    s_mul_i32 s{sT0}, s{sB}, 1152
    s_add_u32 s{sT0}, s{sT0}, s{sT1}
    v_cmp_gt_u32 vcc, 32, v1
    s_and_saveexec_b64 s[{sEX}:{sEX+1}], vcc
    buffer_store_short v16, v7, s[{S_OUT}:{S_OUT+3}], s{sT0} offen
    s_mov_b64 exec, s[{sEX}:{sEX+1}]
    """)
    a.label("p4_end")
    stamp(a, R, "end")
    stamp_dump(a)


def gen(a):
    name = NAME + "_kernel"
    a.raw(".text")
    a.raw(f".globl {name}")
    a.raw(".p2align 8")
    a.raw(f".type {name},@function")
    a.label(name)
    a(f"""
    s_cmp_ge_u32 s2, 256
    s_cbranch_scc1 k_end
    s_load_dwordx2 s[{S_X}:{S_X+1}], s[0:1], 0
    s_load_dwordx2 s[{S_CKV}:{S_CKV+1}], s[0:1], 8
    s_load_dwordx2 s[{S_WQ}:{S_WQ+1}], s[0:1], 16
    s_load_dwordx2 s[{S_WUK}:{S_WUK+1}], s[0:1], 24
    s_load_dwordx2 s[{S_WUV}:{S_WUV+1}], s[0:1], 32
    s_load_dwordx2 s[{S_WO}:{S_WO+1}], s[0:1], 40
    s_load_dwordx2 s[{S_W1}:{S_W1+1}], s[0:1], 56
    s_load_dwordx2 s[{S_B1}:{S_B1+1}], s[0:1], 64
    s_load_dwordx2 s[{S_W2}:{S_W2+1}], s[0:1], 72
    s_load_dwordx2 s[{S_B2}:{S_B2+1}], s[0:1], 80
    s_load_dwordx2 s[{S_GATE}:{S_GATE+1}], s[0:1], 88
    s_load_dwordx2 s[{S_OUT}:{S_OUT+1}], s[0:1], 96
    s_load_dwordx2 s[{S_DBG}:{S_DBG+1}], s[0:1], 104
    s_load_dwordx2 s[{S_WS}:{S_WS+1}], s[0:1], 112
    s_load_dwordx2 s[{S_FP}:{S_FP+1}], s[0:1], 112
    """)
    srd(a, S_X, 2304); srd(a, S_CKV, 16777216); srd(a, S_WQ, 4718592); srd(a, S_WUK, 4194304)
    srd(a, S_WUV, 4194304); srd(a, S_WO, 4718592); srd(a, S_W1, 5308416); srd(a, S_B1, 9216)
    srd(a, S_W2, 5308416); srd(a, S_B2, 1152); srd(a, S_GATE, 1152); srd(a, S_OUT, 2304)
    srd(a, S_DBG, 256); srd(a, S_WS, 268435456); srd(a, S_FP, 72 * 4608)
    a(f"""
    s_mov_b32 s{sLO}, 0x05040100
    s_mov_b32 s{sHI}, 0x07060302
    v_readfirstlane_b32 s{sWAVE}, v0
    s_lshr_b32 s{sWAVE}, s{sWAVE}, 6
    v_and_b32 v1, 63, v0
    s_waitcnt lgkmcnt(0)
    s_add_u32 s{S_FP}, s{S_FP}, {WS_FFNP}
    s_addc_u32 s{S_FP+1}, s{S_FP+1}, 0
    """)
    stamp(a, "A", "start");
    if STAMP:
        STAMPS["B"].append("start")
    a(f"""
    s_cmp_ge_u32 s2, 128
    s_cbranch_scc1 role_b
    s_add_u32 s{sT0}, s2, s{sWAVE}
    s_cmp_lg_u32 s{sT0}, 0
    s_cbranch_scc1 a_nonw
    s_memrealtime s[{sTS}:{sTS+1}]
    v_mov_b32 v14, 0
    s_waitcnt lgkmcnt(0)
    s_or_b32 s{sTS}, s{sTS}, 1
    v_mov_b32 v13, s{sTS}
    buffer_store_dword v13, v14, s[{S_DBG}:{S_DBG+3}], 0 offen sc1
    a_nonw:
    """)
    role_a(a)
    a.label("role_b")
    role_b(a)
    a.label("k_end")
    a("s_endpgm")
    a.raw('.section .rodata,"a"')
    a.raw(".p2align 6")
    a.raw(f".amdhsa_kernel {name}")
    a.raw("  .amdhsa_next_free_vgpr 168")
    a.raw("  .amdhsa_next_free_sgpr 102")
    a.raw("  .amdhsa_accum_offset 168")
    a.raw("  .amdhsa_group_segment_fixed_size 0")
    a.raw("  .amdhsa_kernarg_size 120")
    a.raw("  .amdhsa_user_sgpr_count 2")
    a.raw("  .amdhsa_user_sgpr_kernarg_segment_ptr 1")
    a.raw("  .amdhsa_system_sgpr_workgroup_id_x 1")
    a.raw(".end_amdhsa_kernel")


def main():
    out = sys.argv[1] if len(sys.argv) > 1 else f"cdna_kernels/{NAME}.s"
    hdr = open(f"cdna_kernels/{NAME}.s.ref").read().split("\n")
    hdr = [l for l in hdr if l.startswith(";") and "@launch" not in l]
    a = A()
    for l in hdr:
        a.raw(l)
    a.raw(f"; @launch grid=(256,1,1) block=(576,1,1) lds={LDS_TOTAL}")
    a.raw('.amdgcn_target "amdgcn-amd-amdhsa--gfx950"')
    gen(a)
    open(out, "w").write(a.text())
    if STAMP:
        print(STAMPS)


main()
```

```python
import sys, os, struct

NAME = "gated_mix__compressed_kv_cla__dense_activation_squared_relu__decode"
STAMP = int(os.environ.get("STAMP", "0"))
WQPOL = os.environ.get("WQPOL", "nt")
BDELAY = os.environ.get("BDELAY", "nonce")
WOPOL = os.environ.get("WOPOL", "nt")

WS_QA = 0
WS_ML = 0x80000
WS_FFNP = 0x100000
WS_AP = 0x200000
WS_TS = 0x400000
WS_QP = 0xA0000
WS_FL = 0xF0000
WS_OP = 0x1000000

SCALE_LOG2 = (128 ** -0.5) * 1.4426950408889634
SPIN_MAX = 200000


def f32bits(x):
    return struct.unpack("<I", struct.pack("<f", x))[0]


class A:
    def __init__(self):
        self.l = []
        self.n = 0
    def __call__(self, s):
        for line in s.strip("\n").split("\n"):
            if line.strip():
                self.l.append("    " + line.strip())
    def label(self, s):
        self.l.append(s + ":")
    def raw(self, s):
        self.l.append(s)
    def uniq(self, p):
        self.n += 1
        return f"{p}_{self.n}"
    def text(self):
        return "\n".join(self.l) + "\n"


S_X, S_CKV, S_WQ, S_WUK, S_WUV, S_WO, S_W1, S_B1, S_W2, S_B2, S_GATE, S_OUT, S_DBG, S_WS, S_FP = \
    4, 8, 12, 16, 20, 24, 28, 32, 36, 40, 44, 48, 52, 56, 60
sWAVE, sH, sJ, sB, sSPLIT, sLO, sHI, sT0, sT1, sT2, sT3, sF, sCNT = 64, 65, 66, 67, 68, 69, 70, 72, 73, 74, 75, 76, 77
sEX = 78
sTS = 80
sNONCE = 71
sIDX = 3
sQA = 68

LDS_TOTAL = 163840
LA_SM = 0
LA_R1 = 2048
LA_R2 = 40960
LB_C = 0
LB_R = 131072
OROW = 1040


def srd(a, s, size):
    a(f"s_mov_b32 s{s+2}, {size}")
    a(f"s_mov_b32 s{s+3}, 0x00020000")


def dot_rows(a, W, nrows, X, acc, tmp, waits=None):
    for p in range(nrows // 2):
        if waits is not None and waits[p] is not None:
            a(f"s_waitcnt vmcnt({waits[p]})")
        for q in range(4):
            r0 = W + 4 * (2 * p) + q
            r1 = W + 4 * (2 * p + 1) + q
            a(f"v_perm_b32 v{tmp}, v{r1}, v{r0}, s{sLO}")
            a(f"v_perm_b32 v{tmp+1}, v{r1}, v{r0}, s{sHI}")
            for b in range(len(X)):
                a(f"v_dot2c_f32_bf16 v{acc[b]+2*q}, v{tmp}, v{X[b]+p}")
                a(f"v_dot2c_f32_bf16 v{acc[b]+2*q+1}, v{tmp+1}, v{X[b]+p}")


def sum_tree(a, regs):
    regs = list(regs)
    while len(regs) > 1:
        nxt = []
        for i in range(0, len(regs) - 1, 2):
            a(f"v_add_f32 v{regs[i]}, v{regs[i]}, v{regs[i+1]}")
            nxt.append(regs[i])
        if len(regs) % 2:
            nxt.append(regs[-1])
        regs = nxt


def round_bf16(a, v):
    a(f"v_cvt_pk_bf16_f32 v{v}, v{v}, v{v}")
    a(f"v_lshlrev_b32 v{v}, 16, v{v}")


def xrow_reduce(a, op, v, t):
    a(f"v_mov_b32 v{t}, v{v}")
    a("s_nop 1")
    a(f"v_permlane16_swap_b32 v{v}, v{t}")
    a("s_nop 1")
    a(f"{op} v{v}, v{v}, v{t}")
    a(f"v_mov_b32 v{t}, v{v}")
    a("s_nop 1")
    a(f"v_permlane32_swap_b32 v{v}, v{t}")
    a("s_nop 1")
    a(f"{op} v{v}, v{v}, v{t}")


def wave_reduce(a, op, v, t):
    for m in ("quad_perm:[1,0,3,2]", "quad_perm:[2,3,0,1]", "row_half_mirror", "row_mirror"):
        a("s_nop 1")
        a(f"{op}_dpp v{v}, v{v}, v{v} {m} row_mask:0xf bank_mask:0xf")
    xrow_reduce(a, op, v, t)


def skip_if_wave_ge(a, n, label):
    a(f"s_cmp_ge_u32 s{sWAVE}, {n}")
    a(f"s_cbranch_scc1 {label}")


STAMPS = {"A": [], "B": []}
def stamp(a, role, name):
    if not STAMP:
        return
    STAMPS[role].append(name)
    idx = len(STAMPS[role]) - 1
    a(f"s_memrealtime s[{sTS}:{sTS+1}]")
    a(f"s_waitcnt lgkmcnt(0)")
    a(f"s_mov_b32 s{82+idx}, s{sTS}")


DBGDUMP = int(os.environ.get("DBGDUMP", "0"))
def stamp_dump(a):
    if not STAMP:
        return
    if DBGDUMP:
        l = a.uniq("dd")
        a(f"s_cmp_lg_u32 s{sWAVE}, 0")
        a(f"s_cbranch_scc1 {l}")
        a(f"v_mov_b32 v4, 0")
        a(f"s_cmp_lg_u32 s2, 5")
        a(f"s_cbranch_scc1 {l}_b")
        for k, i in enumerate([2, 4, 6, 7, 8, 9, 12]):
            a(f"s_sub_u32 s{sT3}, s{82+i}, s82")
            a(f"v_mov_b32 v2, s{sT3}")
            a(f"buffer_store_dword v2, v4, s[{S_DBG}:{S_DBG+3}], 0 offen offset:{4+4*k}")
        a.label(f"{l}_b")
        a(f"s_cmp_lg_u32 s2, 133")
        a(f"s_cbranch_scc1 {l}")
        for k, i in enumerate([1, 2, 3, 4, 6, 8, 10, 11]):
            a(f"s_sub_u32 s{sT3}, s{82+i}, s82")
            a(f"v_mov_b32 v2, s{sT3}")
            a(f"buffer_store_dword v2, v4, s[{S_DBG}:{S_DBG+3}], 0 offen offset:{32+4*k}")
        a.label(l)
        return
    a(f"v_mov_b32 v4, 0")
    a(f"v_mov_b32 v3, 0")
    a(f"s_mul_i32 s{sT3}, s2, 9")
    a(f"s_add_u32 s{sT3}, s{sT3}, s{sWAVE}")
    a(f"s_lshl_b32 s{sT3}, s{sT3}, 8")
    a(f"s_add_u32 s{sT3}, s{sT3}, {WS_TS}")
    for i in range(19):
        a(f"v_mov_b32 v2, s{82+i}")
        a(f"buffer_store_dwordx2 v[2:3], v4, s[{S_WS}:{S_WS+3}], s{sT3} offen offset:{i*8}")
        a("s_nop 1")


def signal(a, e):
    l = a.uniq("sig")
    a(f"s_cmp_lg_u32 s{sWAVE}, 8")
    a(f"s_cbranch_scc1 {l}")
    a(f"s_lshl_b32 s{sT0}, s{sIDX}, 2")
    a(f"s_add_u32 s{sT0}, s{sT0}, {WS_FL + e*8192}")
    a(f"v_mov_b32 v2, s{sNONCE}")
    a(f"v_lshlrev_b32 v3, 10, v1")
    a(f"v_cmp_gt_u32 vcc, 8, v1")
    a(f"s_and_saveexec_b64 s[{sEX}:{sEX+1}], vcc")
    a(f"buffer_store_dword v2, v3, s[{S_WS}:{S_WS+3}], s{sT0} offen sc1")
    a(f"s_mov_b64 exec, s[{sEX}:{sEX+1}]")
    a.label(l)


def poll(a, e):
    l = a.uniq("poll")
    a(f"s_cmp_lg_u32 s{sWAVE}, 8")
    a(f"s_cbranch_scc1 {l}_done")
    a(f"v_and_b32 v2, 31, v1")
    a(f"v_lshlrev_b32 v2, 4, v2")
    a(f"s_and_b32 s{sT0}, s2, 7")
    a(f"s_lshl_b32 s{sT0}, s{sT0}, 10")
    a(f"s_add_u32 s{sT0}, s{sT0}, {WS_FL + e*8192}")
    a(f"s_mov_b32 s{sCNT}, 0")
    a.label(f"{l}_loop")
    a(f"buffer_load_dwordx4 v[12:15], v2, s[{S_WS}:{S_WS+3}], s{sT0} offen sc1")
    a(f"s_add_u32 s{sCNT}, s{sCNT}, 1")
    a(f"s_waitcnt vmcnt(0)")
    a(f"v_xor_b32 v12, s{sNONCE}, v12")
    a(f"v_xor_b32 v13, s{sNONCE}, v13")
    a(f"v_xor_b32 v14, s{sNONCE}, v14")
    a(f"v_xor_b32 v15, s{sNONCE}, v15")
    a(f"v_or3_b32 v12, v12, v13, v14")
    a(f"v_or_b32 v12, v12, v15")
    a(f"v_cmp_ne_u32 vcc, 0, v12")
    a(f"s_cmp_ge_u32 s{sCNT}, {SPIN_MAX}")
    a(f"s_cbranch_scc1 {l}_done")
    a(f"s_cbranch_vccnz {l}_loop")
    a.label(f"{l}_done")
    a("s_barrier")


def any_sentinel(a, regs, t):
    regs = list(regs)
    a(f"v_max3_u32 v{t}, v{regs[0]}, v{regs[1]}, v{regs[2]}")
    i = 3
    while i + 1 < len(regs):
        a(f"v_max3_u32 v{t}, v{t}, v{regs[i]}, v{regs[i+1]}")
        i += 2
    if i < len(regs):
        a(f"v_max_u32 v{t}, v{t}, v{regs[i]}")
    a(f"v_cmp_eq_u32 vcc, -1, v{t}")


def retry_tail(a, l):
    a(f"s_add_u32 s{sCNT}, s{sCNT}, 1")
    a(f"s_cmp_ge_u32 s{sCNT}, {SPIN_MAX}")
    a(f"s_cbranch_scc1 {l}_ok")
    a(f"s_cbranch_vccnz {l}_retry")
    a.label(f"{l}_ok")


def nonce_wait(a, first_issued):
    l = a.uniq("nw")
    a(f"s_mov_b32 s{sCNT}, 0")
    a(f"v_mov_b32 v14, 0")
    if first_issued:
        a(f"s_branch {l}_chk")
    a.label(f"{l}_loop")
    a(f"buffer_load_dword v13, v14, s[{S_DBG}:{S_DBG+3}], 0 offen sc1")
    a.label(f"{l}_chk")
    a(f"s_add_u32 s{sCNT}, s{sCNT}, 1")
    a(f"s_waitcnt vmcnt(0)")
    a(f"v_readfirstlane_b32 s{sNONCE}, v13")
    a(f"s_cmp_ge_u32 s{sCNT}, {SPIN_MAX}")
    a(f"s_cbranch_scc1 {l}_done")
    a(f"s_cmp_eq_u32 s{sNONCE}, 0")
    a(f"s_cbranch_scc1 {l}_loop")
    a.label(f"{l}_done")


def role_a(a):
    R = "A"
    a(f"""
    s_and_b32 s{sH}, s2, 7
    s_lshr_b32 s{sT0}, s2, 3
    s_and_b32 s{sT0}, s{sT0}, 3
    s_lshl_b32 s{sT0}, s{sT0}, 3
    s_add_u32 s{sH}, s{sH}, s{sT0}
    s_lshr_b32 s{sJ}, s2, 5
    s_mov_b32 s{sIDX}, s2
    v_lshrrev_b32 v5, 4, v0
    v_and_b32 v6, 15, v0
    v_lshrrev_b32 v7, 4, v1
    v_mul_u32_u24 v10, 911, v0
    v_lshrrev_b32 v10, 16, v10
    v_mul_u32_u24 v11, 72, v10
    v_sub_u32 v11, v0, v11
    v_lshlrev_b32 v8, 13, v6
    v_lshl_add_u32 v8, v7, 4, v8
    s_lshl_b32 s{sT0}, s{sJ}, 7
    s_lshl_b32 s{sT1}, s{sWAVE}, 4
    s_add_u32 s{sT0}, s{sT0}, s{sT1}
    s_lshl_b32 s{sT0}, s{sT0}, 13
    s_lshl_b32 s{sT1}, s{sH}, 8
    s_add_u32 s{sT0}, s{sT0}, s{sT1}
    s_mov_b32 s{sF}, s{sT0}
    v_lshlrev_b32 v4, 3, v5
    s_mul_i32 s{sT1}, s{sJ}, 288
    v_lshlrev_b32 v3, 15, v5
    v_lshl_add_u32 v3, v6, 4, v3
    s_mul_i32 s{sT0}, s{sJ}, {144*8192}
    s_lshl_b32 s{sT2}, s{sH}, 8
    s_add_u32 s{sT0}, s{sT0}, s{sT2}
    buffer_load_dwordx2 v[128:129], v4, s[{S_X}:{S_X+3}], s{sT1} offen
    buffer_load_dwordx2 v[136:137], v4, s[{S_X}:{S_X+3}], s{sT1} offen offset:1152
    """)
    for i in range(4):
        a(f"buffer_load_dwordx4 v[{64+4*i}:{67+4*i}], v3, s[{S_WQ}:{S_WQ+3}], s{sT0} offen nt")
        if i < 3:
            a(f"s_add_u32 s{sT0}, s{sT0}, 8192")
    a(f"""
    v_mov_b32 v14, 0
    s_cmp_lg_u32 s{sWAVE}, 8
    s_cbranch_scc1 a0_non
    buffer_load_dword v13, v14, s[{S_DBG}:{S_DBG+3}], 0 offen sc1
    a0_non:
    """)
    a(f"""
    s_lshl_b32 s{sQA}, s{sJ}, 2
    s_and_b32 s{sT2}, s{sWAVE}, 7
    s_lshr_b32 s{sT1}, s{sT2}, 1
    s_add_u32 s{sQA}, s{sQA}, s{sT1}
    s_lshl_b32 s{sQA}, s{sQA}, 1
    s_lshr_b32 s{sT1}, s{sH}, 4
    s_add_u32 s{sQA}, s{sQA}, s{sT1}
    s_lshl_b32 s{sQA}, s{sQA}, 6
    s_and_b32 s{sT1}, s{sT2}, 1
    s_lshl_b32 s{sT1}, s{sT1}, 5
    s_add_u32 s{sQA}, s{sQA}, s{sT1}
    s_and_b32 s{sT1}, s{sH}, 15
    s_add_u32 s{sQA}, s{sQA}, s{sT1}
    s_lshl_b32 s{sQA}, s{sQA}, 4
    v_lshlrev_b32 v9, 15, v6
    v_lshrrev_b32 v2, 1, v7
    v_lshl_add_u32 v9, v2, 8, v9
    v_and_b32 v2, 1, v7
    v_lshl_add_u32 v9, v2, 3, v9
    """)
    for i in range(16):
        a(f"v_mov_b32 v{144+i}, 0")
    dot_rows(a, 64, 4, [128, 136], [144, 152], 20, waits=[2, 0])
    stamp(a, R, "dot")
    a(f"""
    s_nop 3
    v_lshlrev_b32 v4, 10, v5
    v_lshl_add_u32 v4, v6, 5, v4
    ds_write_b128 v4, v[144:147] offset:{LA_R1}
    ds_write_b128 v4, v[148:151] offset:{LA_R1+16}
    ds_write_b128 v4, v[152:155] offset:{LA_R1+512}
    ds_write_b128 v4, v[156:159] offset:{LA_R1+528}
    s_cmp_lg_u32 s{sWAVE}, 8
    s_cbranch_scc1 a1_non
    """)
    nonce_wait(a, True)
    a(f"ds_write_b32 v14, v13 offset:{LA_SM+1024}")
    a.label("a1_non")
    a("""
    s_waitcnt lgkmcnt(0)
    s_barrier
    """)
    a(f"""
    v_mov_b32 v14, 0
    ds_read_b32 v13, v14 offset:{LA_SM+1024}
    s_waitcnt lgkmcnt(0)
    v_readfirstlane_b32 s{sNONCE}, v13
    """)
    stamp(a, R, "bar1")
    if BDELAY == "flag":
        signal(a, 3)
    skip_if_wave_ge(a, 4, "a1_skip_pub")
    a("v_lshlrev_b32 v4, 2, v0")
    for g in range(36):
        a(f"ds_read_b32 v{80+g}, v4 offset:{LA_R1+g*1024}")
    a("s_waitcnt lgkmcnt(0)")
    sum_tree(a, range(80, 116))
    a(f"""
    v_mov_b32 v12, v80
    v_lshlrev_b32 v4, 3, v0
    s_lshl_b32 s{sT0}, s{sH}, 13
    s_add_u32 s{sT0}, s{sT0}, {WS_QP}
    s_lshl_b32 s{sT1}, s{sJ}, 11
    s_add_u32 s{sT1}, s{sT1}, s{sT0}
    buffer_store_dwordx2 v[12:13], v4, s[{S_WS}:{S_WS+3}], s{sT1} offen sc1
    s_mov_b32 s{sCNT}, 0
    """)
    a.label("a1_skip_pub")
    a("s_barrier")
    stamp(a, R, "pub")
    a(f"""
    s_cmp_ge_u32 s{sWAVE}, 8
    s_cbranch_scc1 a0_nowuk
    buffer_load_dwordx4 v[48:51], v8, s[{S_WUK}:{S_WUK+3}], s{sF} offen nt
    buffer_load_dwordx4 v[52:55], v8, s[{S_WUK}:{S_WUK+3}], s{sF} offen offset:64 nt
    buffer_load_dwordx4 v[56:59], v8, s[{S_WUK}:{S_WUK+3}], s{sF} offen offset:128 nt
    buffer_load_dwordx4 v[60:63], v8, s[{S_WUK}:{S_WUK+3}], s{sF} offen offset:192 nt
    a0_nowuk:
    """)
    skip_if_wave_ge(a, 4, "a1_skip_red")
    a.label("qx_retry")
    a(f"""
    buffer_load_dwordx2 v[16:17], v4, s[{S_WS}:{S_WS+3}], s{sT0} offen sc1
    buffer_load_dwordx2 v[18:19], v4, s[{S_WS}:{S_WS+3}], s{sT0} offen offset:2048 sc1
    s_add_u32 s{sT1}, s{sT0}, 4096
    buffer_load_dwordx2 v[20:21], v4, s[{S_WS}:{S_WS+3}], s{sT1} offen sc1
    buffer_load_dwordx2 v[22:23], v4, s[{S_WS}:{S_WS+3}], s{sT1} offen offset:2048 sc1
    s_waitcnt vmcnt(0)
    v_xor_b32 v17, v17, v13
    v_xor_b32 v19, v19, v13
    v_xor_b32 v21, v21, v13
    v_xor_b32 v23, v23, v13
    v_or3_b32 v17, v17, v19, v21
    v_or_b32 v17, v17, v23
    v_cmp_ne_u32 vcc, 0, v17
    """)
    retry_tail(a, "qx")
    a(f"""
    v_add_f32 v16, v16, v18
    v_add_f32 v20, v20, v22
    v_add_f32 v16, v16, v20
    v_cvt_pk_bf16_f32 v16, v16, v16
    v_lshlrev_b32 v4, 1, v0
    ds_write_b16 v4, v16 offset:{LA_SM}
    s_waitcnt lgkmcnt(0)
    """)
    a.label("a1_skip_red")
    a("s_barrier")
    stamp(a, R, "qred")
    skip_if_wave_ge(a, 8, "a1_done")
    for i in range(20):
        a(f"v_mov_b32 v{16+i}, 0")
    a(f"""
    v_lshlrev_b32 v8, 8, v6
    v_lshl_add_u32 v8, v7, 4, v8
    v_cmp_gt_u32 vcc, 2, v6
    s_and_saveexec_b64 s[{sEX}:{sEX+1}], vcc
    ds_read_b128 v[16:19], v8 offset:{LA_SM}
    ds_read_b128 v[20:23], v8 offset:{LA_SM+64}
    ds_read_b128 v[24:27], v8 offset:{LA_SM+128}
    ds_read_b128 v[28:31], v8 offset:{LA_SM+192}
    s_mov_b64 exec, s[{sEX}:{sEX+1}]
    s_waitcnt vmcnt(0) lgkmcnt(0)
    s_nop 4
    v_mfma_f32_16x16x32_bf16 v[32:35], v[48:51], v[16:19], v[32:35]
    v_mfma_f32_16x16x32_bf16 v[32:35], v[52:55], v[20:23], v[32:35]
    v_mfma_f32_16x16x32_bf16 v[32:35], v[56:59], v[24:27], v[32:35]
    v_mfma_f32_16x16x32_bf16 v[32:35], v[60:63], v[28:31], v[32:35]
    s_nop 7
    s_nop 1
    v_cvt_pk_bf16_f32 v36, v32, v33
    v_cvt_pk_bf16_f32 v37, v34, v35
    v_cmp_gt_u32 vcc, 2, v6
    s_and_saveexec_b64 s[{sEX}:{sEX+1}], vcc
    buffer_store_dwordx2 v[36:37], v9, s[{S_WS}:{S_WS+3}], s{sQA} offen sc1
    s_mov_b64 exec, s[{sEX}:{sEX+1}]
    """)
    a.label("a1_done")
    a("s_waitcnt vmcnt(0)")
    a("s_barrier")
    stamp(a, R, "pre1")
    signal(a, 0)
    a("s_barrier")
    stamp(a, R, "sig1")
    skip_if_wave_ge(a, 8, "a_nowuv")
    a(f"""
    v_lshlrev_b32 v8, 13, v7
    v_lshl_add_u32 v8, v6, 4, v8
    s_lshl_b32 s{sT0}, s{sJ}, 20
    s_lshl_b32 s{sT1}, s{sH}, 8
    s_add_u32 s{sT0}, s{sT0}, s{sT1}
    s_lshl_b32 s{sT1}, s{sWAVE}, 17
    s_add_u32 s{sT0}, s{sT0}, s{sT1}
    s_lshl_b32 s{sT1}, s{sWAVE}, 12
    """)
    for u in range(4):
        a(f"s_mov_b32 m0, s{sT1}")
        a(f"s_add_u32 s{sT1}, s{sT1}, 1024")
        a(f"buffer_load_dwordx4 v8, s[{S_WUV}:{S_WUV+3}], s{sT0} offen nt lds")
        a(f"s_add_u32 s{sT0}, s{sT0}, 32768")
    a.label("a_nowuv")
    a(f"""
    v_lshlrev_b32 v8, 4, v1
    s_mul_i32 s{sT0}, s{sH}, 147456
    s_mul_i32 s{sT1}, s{sWAVE}, 12288
    s_add_u32 s{sT1}, s{sT1}, 36864
    s_add_u32 s{sT0}, s{sT0}, s{sT1}
    """)
    for u in range(12):
        a(f"s_mov_b32 m0, s{sT1}")
        a(f"s_add_u32 s{sT1}, s{sT1}, 1024")
        a(f"buffer_load_dwordx4 v8, s[{S_WO}:{S_WO+3}], s{sT0} offen {WOPOL} lds")
        a(f"s_add_u32 s{sT0}, s{sT0}, 1024")
    a("s_waitcnt vmcnt(12)")
    a("s_barrier")
    a(f"""
    v_lshrrev_b32 v2, 2, v6
    v_lshl_add_u32 v2, v7, 3, v2
    v_and_b32 v3, 3, v1
    v_lshlrev_b32 v3, 3, v3
    """)
    skip_if_wave_ge(a, 8, "a_nowuv2")
    a(f"""
    v_lshl_add_u32 v4, v2, 8, v3
    s_lshl_b32 s{sT1}, s{sWAVE}, 5
    v_add_u32 v4, s{sT1}, v4
    """)
    for ks in range(4):
        for t in range(2):
            a(f"ds_read_b64_tr_b16 v[{48+4*ks+2*t}:{48+4*ks+2*t+1}], v4 offset:{(ks*32+4*t)*256}")
    a("s_waitcnt lgkmcnt(0)")
    a.label("a_nowuv2")
    a("s_barrier")
    a(f"""
    s_mul_i32 s{sT0}, s{sH}, 147456
    s_lshl_b32 s{sT1}, s{sWAVE}, 12
    s_add_u32 s{sT0}, s{sT0}, s{sT1}
    """)
    for u in range(4):
        a(f"s_mov_b32 m0, s{sT1}")
        a(f"s_add_u32 s{sT1}, s{sT1}, 1024")
        a(f"buffer_load_dwordx4 v8, s[{S_WO}:{S_WO+3}], s{sT0} offen {WOPOL} lds")
        a(f"s_add_u32 s{sT0}, s{sT0}, 1024")
    a(f"""
    v_mul_u32_u24 v4, 1152, v2
    v_add_u32 v4, v4, v3
    s_lshl_b32 s{sT1}, s{sWAVE}, 7
    v_add_u32 v4, s{sT1}, v4
    v_add_u32 v9, {64*1152}, v4
    s_waitcnt vmcnt(0)
    s_barrier
    """)
    for nt in range(4):
        for ks in range(4):
            for t in range(2):
                r = 64 + 16 * nt + 4 * ks + 2 * t
                base = 4 if ks < 2 else 9
                off = ((ks & 1) * 32 + 4 * t) * 1152 + nt * 32
                a(f"ds_read_b64_tr_b16 v[{r}:{r+1}], v{base} offset:{off}")
        a("s_waitcnt lgkmcnt(0)")
    a("s_barrier")
    stamp(a, R, "ffn")
    poll(a, 1)
    stamp(a, R, "e2")
    L3_CC = LA_SM
    L3_PC = LA_SM + 512
    L3_P1 = LA_R1
    skip_if_wave_ge(a, 8, "p3_s1skip")
    a(f"""
    v_lshrrev_b32 v4, 4, v5
    v_lshlrev_b32 v4, 21, v4
    v_and_b32 v12, 15, v5
    v_lshl_add_u32 v4, v12, 12, v4
    v_lshl_add_u32 v4, v6, 4, v4
    s_lshl_b32 s{sT0}, s{sH}, 16
    s_lshl_b32 s{sT1}, s{sJ}, 8
    s_add_u32 s{sT0}, s{sT0}, s{sT1}
    s_add_u32 s{sT0}, s{sT0}, {WS_OP}
    v_lshlrev_b32 v3, 3, v1
    s_lshr_b32 s{sT1}, s{sWAVE}, 2
    s_lshl_b32 s{sT1}, s{sT1}, 5
    s_add_u32 s{sT1}, s{sT1}, s{sH}
    s_lshl_b32 s{sT1}, s{sT1}, 9
    s_add_u32 s{sT1}, s{sT1}, {WS_ML}
    buffer_load_dwordx2 v[32:33], v3, s[{S_WS}:{S_WS+3}], s{sT1} offen sc1
    """)
    for u in range(4):
        a(f"buffer_load_dwordx4 v[{16+4*u}:{19+4*u}], v4, s[{S_WS}:{S_WS+3}], s{sT0} offen offset:{u*1024} sc1")
    a(f"""
    v_lshlrev_b32 v12, 4, v12
    s_waitcnt vmcnt(4)
    v_mov_b32 v36, v32
    """)
    wave_reduce(a, "v_max_f32", 36, 37)
    a("""
    v_sub_f32 v32, v32, v36
    v_exp_f32 v32, v32
    s_nop 0
    v_mul_f32 v36, v32, v33
    """)
    wave_reduce(a, "v_add_f32", 36, 37)
    a(f"""
    v_rcp_f32 v36, v36
    s_nop 0
    v_mul_f32 v36, v32, v36
    ds_bpermute_b32 v32, v12, v36
    ds_bpermute_b32 v33, v12, v36 offset:4
    ds_bpermute_b32 v34, v12, v36 offset:8
    ds_bpermute_b32 v35, v12, v36 offset:12
    s_waitcnt vmcnt(0) lgkmcnt(0)
    """)
    for u in range(4):
        for q in range(4):
            a(f"v_lshlrev_b32 v36, 16, v{16+4*u+q}")
            a(f"v_and_b32 v37, 0xffff0000, v{16+4*u+q}")
            if u == 0:
                a(f"v_mul_f32 v{40+2*q}, v32, v36")
                a(f"v_mul_f32 v{41+2*q}, v32, v37")
            else:
                a(f"v_fmac_f32 v{40+2*q}, v{32+u}, v36")
                a(f"v_fmac_f32 v{41+2*q}, v{32+u}, v37")
    a(f"""
    v_lshlrev_b32 v4, 9, v5
    v_lshl_add_u32 v4, v6, 5, v4
    ds_write_b128 v4, v[40:43] offset:{L3_P1}
    ds_write_b128 v4, v[44:47] offset:{L3_P1+16}
    s_waitcnt lgkmcnt(0)
    """)
    a.label("p3_s1skip")
    a("s_barrier")
    stamp(a, R, "s1")
    skip_if_wave_ge(a, 4, "p3_r1skip")
    a(f"""
    v_and_b32 v4, 127, v0
    v_lshlrev_b32 v4, 2, v4
    v_lshrrev_b32 v12, 7, v0
    v_lshl_add_u32 v4, v12, 13, v4
    """)
    for g in range(16):
        a(f"ds_read_b32 v{16+g}, v4 offset:{L3_P1+g*512}")
    a("s_waitcnt lgkmcnt(0)")
    sum_tree(a, range(16, 32))
    a(f"""
    v_cvt_pk_bf16_f32 v16, v16, v16
    v_lshlrev_b32 v4, 1, v0
    ds_write_b16 v4, v16 offset:{L3_CC}
    s_waitcnt lgkmcnt(0)
    """)
    a.label("p3_r1skip")
    a(f"""
    v_lshlrev_b32 v8, 8, v6
    v_lshl_add_u32 v8, v7, 4, v8
    """)
    for i in range(20):
        a(f"v_mov_b32 v{16+i}, 0")
    a("s_barrier")
    stamp(a, R, "r1")
    skip_if_wave_ge(a, 8, "p3_s2skip")
    a(f"""
    v_cmp_gt_u32 vcc, 2, v6
    s_and_saveexec_b64 s[{sEX}:{sEX+1}], vcc
    ds_read_b128 v[16:19], v8 offset:{L3_CC}
    ds_read_b128 v[20:23], v8 offset:{L3_CC+64}
    ds_read_b128 v[24:27], v8 offset:{L3_CC+128}
    ds_read_b128 v[28:31], v8 offset:{L3_CC+192}
    s_mov_b64 exec, s[{sEX}:{sEX+1}]
    s_waitcnt lgkmcnt(0)
    s_nop 4
    v_mfma_f32_16x16x32_bf16 v[32:35], v[16:19], v[48:51], v[32:35]
    v_mfma_f32_16x16x32_bf16 v[32:35], v[20:23], v[52:55], v[32:35]
    v_mfma_f32_16x16x32_bf16 v[32:35], v[24:27], v[56:59], v[32:35]
    v_mfma_f32_16x16x32_bf16 v[32:35], v[28:31], v[60:63], v[32:35]
    s_lshl_b32 s{sT1}, s{sWAVE}, 5
    v_lshlrev_b32 v4, 1, v1
    v_add_u32 v4, s{sT1}, v4
    s_nop 6
    v_cvt_pk_bf16_f32 v36, v32, v33
    v_cmp_gt_u32 vcc, 16, v1
    s_and_saveexec_b64 s[{sEX}:{sEX+1}], vcc
    ds_write_b16 v4, v36 offset:{L3_PC}
    ds_write_b16_d16_hi v4, v36 offset:{L3_PC+256}
    s_mov_b64 exec, s[{sEX}:{sEX+1}]
    s_waitcnt lgkmcnt(0)
    """)
    a.label("p3_s2skip")
    for i in range(16):
        a(f"v_mov_b32 v{16+i}, 0")
    for i in range(16):
        a(f"v_mov_b32 v{32+i}, 0")
    a("s_barrier")
    stamp(a, R, "s2")
    a(f"""
    v_cmp_gt_u32 vcc, 2, v6
    s_and_saveexec_b64 s[{sEX}:{sEX+1}], vcc
    ds_read_b128 v[16:19], v8 offset:{L3_PC}
    ds_read_b128 v[20:23], v8 offset:{L3_PC+64}
    ds_read_b128 v[24:27], v8 offset:{L3_PC+128}
    ds_read_b128 v[28:31], v8 offset:{L3_PC+192}
    s_mov_b64 exec, s[{sEX}:{sEX+1}]
    s_waitcnt lgkmcnt(0)
    s_nop 4
    """)
    for ks in range(4):
        for nt in range(4):
            r = 64 + 16 * nt + 4 * ks
            a(f"v_mfma_f32_16x16x32_bf16 v[{32+4*nt}:{35+4*nt}], v[{r}:{r+3}], v[{16+4*ks}:{19+4*ks}], v[{32+4*nt}:{35+4*nt}]")
    a(f"""
    v_mul_u32_u24 v4, 2304, v6
    v_lshl_add_u32 v4, v7, 4, v4
    s_lshl_b32 s{sT1}, s{sWAVE}, 8
    v_add_u32 v4, s{sT1}, v4
    s_mul_i32 s{sT0}, s2, 9216
    s_add_u32 s{sT0}, s{sT0}, {WS_AP}
    v_cmp_gt_u32 vcc, 2, v6
    v_lshlrev_b32 v3, 3, v0
    v_lshlrev_b32 v2, 4, v0
    v_mov_b32 v17, s{sNONCE}
    v_mov_b32 v19, s{sNONCE}
    s_and_saveexec_b64 s[{sEX}:{sEX+1}], vcc
    ds_write_b128 v4, v[32:35] offset:{LA_R1}
    ds_write_b128 v4, v[36:39] offset:{LA_R1+64}
    ds_write_b128 v4, v[40:43] offset:{LA_R1+128}
    ds_write_b128 v4, v[44:47] offset:{LA_R1+192}
    s_mov_b64 exec, s[{sEX}:{sEX+1}]
    s_waitcnt lgkmcnt(0)
    s_barrier
    ds_read_b64 v[20:21], v3 offset:{LA_R1}
    s_waitcnt lgkmcnt(0)
    v_mov_b32 v16, v20
    v_mov_b32 v18, v21
    buffer_store_dwordx4 v[16:19], v2, s[{S_WS}:{S_WS+3}], s{sT0} offen sc1
    """)
    stamp(a, R, "s3")
    stamp(a, R, "pre3")
    stamp(a, R, "sig3")
    stamp_dump(a)
    a("s_endpgm")


def ffn_prefetch(a, part):
    l = a.uniq("ffnp")
    if part == 0:
        a(f"""
        s_sub_u32 s{sF}, s{sT3}, 36
        v_mul_u32_u24 v10, 911, v0
        v_lshrrev_b32 v10, 16, v10
        v_mul_u32_u24 v11, 72, v10
        v_sub_u32 v11, v0, v11
        """)
    a(f"""
    s_cmp_ge_u32 s{sF}, 72
    s_cbranch_scc1 {l}
    """)
    if part < 2:
        a(f"""
        v_lshrrev_b32 v5, 3, v0
        v_and_b32 v6, 7, v0
        v_mov_b32 v4, 73728
        v_mul_lo_u32 v4, v5, v4
        v_lshl_add_u32 v4, v6, 4, v4
        s_lshl_b32 s{sT2}, s{sF}, 7
        s_add_u32 s{sT2}, s{sT2}, {part*4*9216}
        """)
        for i in range(4):
            r = 104 + 16 * part + 4 * i
            a(f"buffer_load_dwordx4 v[{r}:{r+3}], v4, s[{S_W1}:{S_W1+3}], s{sT2} offen nt")
            if i < 3:
                a(f"s_add_u32 s{sT2}, s{sT2}, 9216")
    else:
        a(f"""
        v_mul_u32_u24 v4, 9216, v10
        v_lshl_add_u32 v4, v11, 4, v4
        s_mul_i32 s{sT2}, s{sF}, 73728
        s_add_u32 s{sT2}, s{sT2}, {(part-2)*4608}
        """)
        for u in range(4):
            r = 136 + 16 * (part - 2) + 4 * u
            a(f"buffer_load_dwordx4 v[{r}:{r+3}], v4, s[{S_W2}:{S_W2+3}], s{sT2} offen offset:{u*1152} nt")
    a.label(l)


def ffn_b(a):
    a(f"""
    s_cmp_ge_u32 s{sF}, 72
    s_cbranch_scc1 ffn_done
    v_lshrrev_b32 v2, 3, v0
    v_and_b32 v3, 7, v0
    v_lshlrev_b32 v4, 4, v2
    buffer_load_dwordx4 v[88:91], v4, s[{S_X}:{S_X+3}], 0 offen
    buffer_load_dwordx4 v[92:95], v4, s[{S_X}:{S_X+3}], 0 offen offset:1152
    v_lshlrev_b32 v9, 1, v1
    s_lshl_b32 s{sT0}, s{sF}, 7
    buffer_load_ushort v12, v9, s[{S_B1}:{S_B1+3}], s{sT0} offen
    s_barrier
    """)
    ffn_prefetch(a, 2)
    ffn_prefetch(a, 3)
    for i in range(16):
        a(f"v_mov_b32 v{16+i}, 0")
    a("s_waitcnt vmcnt(8)")
    dot_rows(a, 104, 8, [88, 92], [16, 24], 14)
    a(f"""
    s_nop 3
    v_lshlrev_b32 v4, 9, v2
    v_lshl_add_u32 v4, v3, 5, v4
    ds_write_b128 v4, v[16:19] offset:{LA_R1}
    ds_write_b128 v4, v[20:23] offset:{LA_R1+16}
    ds_write_b128 v4, v[24:27] offset:{LA_R1+256}
    ds_write_b128 v4, v[28:31] offset:{LA_R1+272}
    s_waitcnt lgkmcnt(0)
    s_barrier
    """)
    skip_if_wave_ge(a, 2, "ffn_skip_red")
    a("v_lshlrev_b32 v4, 2, v0")
    regs = list(range(16, 88))
    for g in range(72):
        a(f"ds_read_b32 v{regs[g]}, v4 offset:{LA_R1+g*512}")
    a("s_waitcnt lgkmcnt(0)")
    sum_tree(a, regs)
    round_bf16(a, 16)
    a("""
    v_lshlrev_b32 v12, 16, v12
    v_add_f32 v16, v16, v12
    """)
    round_bf16(a, 16)
    a(f"""
    v_max_f32 v16, 0, v16
    v_mul_f32 v16, v16, v16
    v_cvt_pk_bf16_f32 v16, v16, v16
    v_lshlrev_b32 v4, 1, v0
    ds_write_b16 v4, v16 offset:{LA_SM}
    s_waitcnt lgkmcnt(0)
    """)
    a.label("ffn_skip_red")
    a(f"""
    s_barrier
    v_lshlrev_b32 v4, 4, v10
    ds_read_b128 v[88:91], v4 offset:{LA_SM}
    ds_read_b128 v[92:95], v4 offset:{LA_SM+128}
    """)
    for i in range(16):
        a(f"v_mov_b32 v{16+i}, 0")
    a("s_waitcnt vmcnt(0) lgkmcnt(0)")
    dot_rows(a, 136, 8, [88, 92], [16, 24], 14)
    a(f"""
    s_nop 3
    v_mul_u32_u24 v4, 4608, v10
    v_lshl_add_u32 v4, v11, 5, v4
    ds_write_b128 v4, v[16:19] offset:{LA_R1}
    ds_write_b128 v4, v[20:23] offset:{LA_R1+16}
    ds_write_b128 v4, v[24:27] offset:{LA_R1+2304}
    ds_write_b128 v4, v[28:31] offset:{LA_R1+2320}
    s_waitcnt lgkmcnt(0)
    s_barrier
    v_lshlrev_b32 v4, 4, v0
    v_cmp_gt_u32 vcc, 288, v0
    s_and_saveexec_b64 s[{sEX}:{sEX+1}], vcc
    s_cbranch_execz ffn_st_skip
    """)
    for r in range(8):
        a(f"ds_read_b128 v[{16+4*r}:{19+4*r}], v4 offset:{LA_R1+r*4608}")
    a("s_waitcnt lgkmcnt(0)")
    for k in range(4):
        sum_tree(a, [16 + 4 * r + k for r in range(8)])
    a(f"""
    s_mul_i32 s{sT0}, s{sF}, 4608
    s_add_u32 s{sT0}, s{sT0}, {WS_FFNP}
    buffer_store_dwordx4 v[16:19], v4, s[{S_WS}:{S_WS+3}], s{sT0} offen sc1
    """)
    a.label("ffn_st_skip")
    a(f"""
    s_mov_b64 exec, s[{sEX}:{sEX+1}]
    s_waitcnt vmcnt(0)
    s_barrier
    """)
    a.label("ffn_done")
    signal(a, 4)


def role_b(a):
    R = "B"
    a(f"""
    s_sub_u32 s{sT3}, s2, 128
    s_lshr_b32 s{sB}, s{sT3}, 6
    s_and_b32 s{sSPLIT}, s{sT3}, 63
    s_mov_b32 s{sIDX}, s{sT3}
    v_lshlrev_b32 v8, 4, v1
    v_mov_b32 v12, -1
    v_mov_b32 v13, -1
    v_mov_b32 v14, -1
    v_mov_b32 v15, -1
    s_cmp_lg_u32 s{sWAVE}, 8
    s_cbranch_scc1 b_dma
    v_lshlrev_b32 v28, 9, v1
    v_and_b32 v28, 0x3fff, v28
    s_lshl_b32 s{sT0}, s{sB}, 14
    s_lshl_b32 s{sT1}, s{sSPLIT}, 3
    s_add_u32 s{sT0}, s{sT0}, s{sT1}
    s_add_u32 s{sT0}, s{sT0}, {WS_ML}
    v_mov_b32 v14, 0
    """)
    nonce_wait(a, False)
    if BDELAY == "none":
        a("s_branch b_nodma")
        a.label("b_dma")
    else:
        a.label("b_dma")
        if BDELAY == "flag":
            poll(a, 3)
        else:
            a("s_barrier")
        skip_if_wave_ge(a, 8, "b_nodma")
    a(f"""
    s_lshl_b32 s{sT0}, s{sB}, 5
    s_lshl_b32 s{sT1}, s{sWAVE}, 2
    s_add_u32 s{sT0}, s{sT0}, s{sT1}
    s_lshl_b32 s{sT0}, s{sT0}, 6
    s_add_u32 s{sT0}, s{sT0}, s{sSPLIT}
    s_lshl_b32 s{sT0}, s{sT0}, 10
    s_add_u32 s{sT0}, s{sT0}, {WS_OP}
    """)
    a(f"""
    s_lshl_b32 s{sT0}, s{sT3}, 17
    s_lshl_b32 s{sT1}, s{sWAVE}, 14
    s_add_u32 s{sT0}, s{sT0}, s{sT1}
    """)
    for r in range(16):
        a(f"v_xor_b32 v{16+r}, {r*16}, v8")
    for r in range(16):
        a(f"s_mov_b32 m0, s{sT1}")
        a(f"s_add_u32 s{sT1}, s{sT1}, 1024")
        a(f"buffer_load_dwordx4 v{16+r}, s[{S_CKV}:{S_CKV+3}], s{sT0} offen nt lds")
        a(f"s_add_u32 s{sT0}, s{sT0}, 1024")
    a(f"""
    v_and_b32 v2, 15, v1
    v_lshrrev_b32 v7, 4, v1
    s_lshl_b32 s{sT1}, s{sWAVE}, 4
    v_add_u32 v3, s{sT1}, v2
    v_lshlrev_b32 v3, 10, v3
    """)
    for k4 in range(4):
        a(f"v_add_u32 v{12+k4}, {k4*4}, v7")
        a(f"v_xor_b32 v{12+k4}, v{12+k4}, v2")
        a(f"v_lshl_add_u32 v{12+k4}, v{12+k4}, 4, v3")
    a("s_waitcnt vmcnt(0)")
    for ks in range(16):
        a(f"ds_read_b128 v[{16+4*ks}:{19+4*ks}], v{12+(ks&3)} offset:{(ks>>2)*256}")
    a("s_waitcnt lgkmcnt(0)")
    a.label("b_nodma")
    stamp(a, R, "dma")
    poll(a, 0)
    stamp(a, R, "e1")
    a(f"""
    v_lshlrev_b32 v4, 4, v0
    s_lshl_b32 s{sT0}, s{sB}, 15
    """)
    skip_if_wave_ge(a, 8, "b_noqa")
    a(f"s_mov_b32 s{sT1}, s{sT0}")
    for u in range(4):
        a(f"buffer_load_dwordx4 v[{80+4*u}:{83+4*u}], v4, s[{S_WS}:{S_WS+3}], s{sT1} offen sc1")
        a(f"s_add_u32 s{sT1}, s{sT1}, 8192")
    a(f"""
    v_add_u32 v4, {LB_R}, v4
    s_waitcnt vmcnt(0)
    ds_write_b128 v4, v[80:83]
    ds_write_b128 v4, v[84:87] offset:8192
    ds_write_b128 v4, v[88:91] offset:16384
    ds_write_b128 v4, v[92:95] offset:24576
    s_waitcnt lgkmcnt(0)
    """)
    a.label("b_noqa")
    a("s_barrier")
    ffn_prefetch(a, 0)
    stamp(a, R, "qa")
    skip_if_wave_ge(a, 8, "b_qk_skip")
    a(f"v_add_u32 v9, {LB_R}, v8")
    for i in range(8):
        a(f"v_mov_b32 v{96+i}, 0")
    def qk_reads(ks):
        base = 80 + 8 * (ks & 1)
        a(f"ds_read_b128 v[{base}:{base+3}], v9 offset:{ks*2048}")
        a(f"ds_read_b128 v[{base+4}:{base+7}], v9 offset:{ks*2048+1024}")
    qk_reads(0)
    qk_reads(1)
    for ks in range(16):
        a(f"s_waitcnt lgkmcnt({2 if ks < 15 else 0})")
        base = 80 + 8 * (ks & 1)
        A_ = 16 + 4 * ks
        a(f"v_mfma_f32_16x16x32_bf16 v[96:99], v[{A_}:{A_+3}], v[{base}:{base+3}], v[96:99]")
        a(f"v_mfma_f32_16x16x32_bf16 v[100:103], v[{A_}:{A_+3}], v[{base+4}:{base+7}], v[100:103]")
        if ks + 2 < 16:
            a("s_nop 1")
            qk_reads(ks + 2)
    a(f"""
    v_lshrrev_b32 v84, 2, v2
    v_lshlrev_b32 v84, 2, v84
    v_lshrrev_b32 v85, 5, v1
    v_lshl_add_u32 v84, v85, 1, v84
    v_and_b32 v85, 1, v7
    v_lshlrev_b32 v85, 1, v85
    v_bfe_u32 v86, v1, 1, 1
    v_add_u32 v85, v85, v86
    s_and_b32 s{sT1}, s{sWAVE}, 1
    s_lshl_b32 s{sT1}, s{sT1}, 3
    v_add_u32 v85, s{sT1}, v85
    v_and_b32 v86, 1, v1
    v_lshlrev_b32 v86, 3, v86
    s_lshr_b32 s{sT1}, s{sWAVE}, 1
    s_lshl_b32 s{sT1}, s{sT1}, 8
    v_add_u32 v86, s{sT1}, v86
    """)
    for nt in range(2):
        for t in range(2):
            d = 12 + 2 * nt + t
            a(f"v_add_u32 v87, {t}, v84")
            a(f"v_add_u32 v88, {4*nt}, v85")
            a(f"v_xor_b32 v88, v88, v87")
            a(f"v_lshl_add_u32 v{d}, v87, 10, v86")
            a(f"v_lshl_add_u32 v{d}, v88, 4, v{d}")
    a(f"s_mov_b32 s{sT1}, {f32bits(SCALE_LOG2)}")
    for i in range(8):
        a(f"v_mul_f32 v{96+i}, s{sT1}, v{96+i}")
    a("""
    v_max3_f32 v80, v96, v97, v98
    v_max_f32 v80, v80, v99
    v_max3_f32 v81, v100, v101, v102
    v_max_f32 v81, v81, v103
    """)
    for ks in range(8):
        if ks == 4:
            for d in range(12, 16):
                a(f"v_add_u32 v{d}, 0x10000, v{d}")
        for nt in range(2):
            for t in range(2):
                r = 16 + 8 * ks + 4 * nt + 2 * t
                a(f"ds_read_b64_tr_b16 v[{r}:{r+1}], v{12+2*nt+t} offset:{(ks&3)*16384}")
    xrow_reduce(a, "v_max_f32", 80, 82)
    xrow_reduce(a, "v_max_f32", 81, 82)
    a.label("b_qk_skip")
    ffn_prefetch(a, 1)
    a("s_barrier")
    stamp(a, R, "qk")
    LB_P = LB_R
    skip_if_wave_ge(a, 8, "b_mx_skip")
    a(f"""
    v_lshlrev_b32 v12, 5, v2
    v_add_u32 v12, {LB_R}, v12
    s_lshl_b32 s{sT1}, s{sWAVE}, 2
    v_add_u32 v13, s{sT1}, v12
    ds_write_b32 v13, v80 offset:8192
    ds_write_b32 v13, v81 offset:{8192+512}
    s_waitcnt lgkmcnt(0)
    """)
    a.label("b_mx_skip")
    a("s_barrier")
    skip_if_wave_ge(a, 8, "b_sm_skip")
    a(f"""
    ds_read_b128 v[80:83], v12 offset:8192
    ds_read_b128 v[84:87], v12 offset:{8192+16}
    ds_read_b128 v[88:91], v12 offset:{8192+512}
    ds_read_b128 v[92:95], v12 offset:{8192+528}
    s_waitcnt lgkmcnt(0)
    v_max3_f32 v80, v80, v81, v82
    v_max3_f32 v80, v80, v83, v84
    v_max3_f32 v80, v80, v85, v86
    v_max_f32 v80, v80, v87
    v_max3_f32 v81, v88, v89, v90
    v_max3_f32 v81, v81, v91, v92
    v_max3_f32 v81, v81, v93, v94
    v_max_f32 v81, v81, v95
    """)
    for i in range(4):
        a(f"v_sub_f32 v{96+i}, v{96+i}, v80")
        a(f"v_sub_f32 v{100+i}, v{100+i}, v81")
    for i in range(8):
        a(f"v_exp_f32 v{96+i}, v{96+i}")
    a(f"""
    s_nop 0
    v_add_f32 v84, v96, v97
    v_add_f32 v85, v98, v99
    v_add_f32 v84, v84, v85
    v_add_f32 v85, v100, v101
    v_add_f32 v86, v102, v103
    v_add_f32 v85, v85, v86
    v_cvt_pk_bf16_f32 v86, v96, v97
    v_cvt_pk_bf16_f32 v87, v98, v99
    v_cvt_pk_bf16_f32 v88, v100, v101
    v_cvt_pk_bf16_f32 v89, v102, v103
    s_lshl_b32 s{sT1}, s{sWAVE}, 10
    s_add_u32 s{sT1}, s{sT1}, {LB_P}
    v_lshlrev_b32 v90, 4, v2
    v_lshl_add_u32 v90, v7, 1, v90
    v_add_u32 v90, s{sT1}, v90
    ds_write_b16 v90, v86
    ds_write_b16_d16_hi v90, v86 offset:8
    ds_write_b16 v90, v87 offset:512
    ds_write_b16_d16_hi v90, v87 offset:520
    ds_write_b16 v90, v88 offset:256
    ds_write_b16_d16_hi v90, v88 offset:264
    ds_write_b16 v90, v89 offset:768
    ds_write_b16_d16_hi v90, v89 offset:776
    """)
    xrow_reduce(a, "v_add_f32", 84, 91)
    xrow_reduce(a, "v_add_f32", 85, 91)
    a(f"""
    ds_write_b32 v13, v84 offset:9216
    ds_write_b32 v13, v85 offset:{9216+512}
    """)
    for i in range(32):
        a(f"v_mov_b32 v{136+i}, 0")
    a(f"""
    v_add_u32 v9, {LB_P}, v8
    s_waitcnt lgkmcnt(0)
    """)
    a.label("b_sm_skip")
    a("s_barrier")
    stamp(a, R, "sm")
    skip_if_wave_ge(a, 8, "b_pv_skip")
    def preads(ks):
        r = 80 + 4 * (ks % 6)
        a(f"ds_read_b128 v[{r}:{r+3}], v9 offset:{ks*1024}")
    for ks in range(6):
        preads(ks)
    for ks in range(8):
        outstanding_after = min(7, ks + 5) - ks if ks < 2 else 7 - ks
        a(f"s_waitcnt lgkmcnt({min(5, 7-ks)})")
        r = 80 + 4 * (ks % 6)
        for nt in range(2):
            c = 16 + 8 * ks + 4 * nt
            a(f"v_mfma_f32_32x32x16_bf16 v[{136+16*nt}:{151+16*nt}], v[{c}:{c+3}], v[{r}:{r+3}], v[{136+16*nt}:{151+16*nt}]")
        if ks + 6 < 8:
            a("s_nop 3")
            preads(ks + 6)
    a("s_nop 7")
    a("s_nop 7")
    for nt in range(2):
        b0_ = 136 + 16 * nt
        for qp in range(2):
            d = 16 + 8 * nt + 4 * qp
            a(f"v_cvt_pk_bf16_f32 v{d}, v{b0_+8*qp}, v{b0_+8*qp+1}")
            a(f"v_cvt_pk_bf16_f32 v{d+1}, v{b0_+8*qp+2}, v{b0_+8*qp+3}")
            a(f"v_cvt_pk_bf16_f32 v{d+2}, v{b0_+8*qp+4}, v{b0_+8*qp+5}")
            a(f"v_cvt_pk_bf16_f32 v{d+3}, v{b0_+8*qp+6}, v{b0_+8*qp+7}")
    a("s_nop 1")
    for nt in range(2):
        for qp in range(2):
            d = 16 + 8 * nt + 4 * qp
            a(f"v_permlane32_swap_b32 v{d}, v{d+2}")
            a(f"v_permlane32_swap_b32 v{d+1}, v{d+3}")
    a.label("b_pv_skip")
    a("s_barrier")
    stamp(a, R, "pv")
    skip_if_wave_ge(a, 8, "b_ow_skip")
    a(f"""
    v_and_b32 v32, 31, v1
    v_mul_u32_u24 v32, {OROW}, v32
    v_lshrrev_b32 v33, 5, v1
    v_lshl_add_u32 v32, v33, 4, v32
    s_lshl_b32 s{sT1}, s{sWAVE}, 7
    v_add_u32 v32, s{sT1}, v32
    ds_write_b128 v32, v[16:19]
    ds_write_b128 v32, v[20:23] offset:32
    ds_write_b128 v32, v[24:27] offset:64
    ds_write_b128 v32, v[28:31] offset:96
    s_waitcnt lgkmcnt(0)
    """)
    a.label("b_ow_skip")
    a("s_barrier")
    skip_if_wave_ge(a, 8, "b_ml")
    a(f"""
    s_mul_i32 s{sT1}, s{sWAVE}, {4*OROW}
    v_add_u32 v29, s{sT1}, v8
    ds_read_b128 v[32:35], v29
    ds_read_b128 v[36:39], v29 offset:{OROW}
    ds_read_b128 v[40:43], v29 offset:{2*OROW}
    ds_read_b128 v[44:47], v29 offset:{3*OROW}
    s_lshl_b32 s{sT0}, s{sB}, 5
    s_lshl_b32 s{sT1}, s{sWAVE}, 2
    s_add_u32 s{sT0}, s{sT0}, s{sT1}
    s_lshl_b32 s{sT0}, s{sT0}, 6
    s_add_u32 s{sT0}, s{sT0}, s{sSPLIT}
    s_lshl_b32 s{sT0}, s{sT0}, 10
    s_add_u32 s{sT0}, s{sT0}, {WS_OP}
    """)
    for u in range(4):
        a(f"s_waitcnt lgkmcnt({3-u})")
        a(f"buffer_store_dwordx4 v[{32+4*u}:{35+4*u}], v8, s[{S_WS}:{S_WS+3}], s{sT0} offen sc1")
        a(f"s_add_u32 s{sT0}, s{sT0}, {64*1024}")
    a("s_branch b_st_done")
    a.label("b_ml")
    a(f"""
    v_lshlrev_b32 v28, 5, v1
    v_add_u32 v28, {LB_R}, v28
    v_cmp_gt_u32 vcc, 32, v1
    s_and_saveexec_b64 s[{sEX}:{sEX+1}], vcc
    ds_read_b128 v[12:15], v28 offset:8192
    ds_read_b128 v[16:19], v28 offset:{8192+16}
    ds_read_b128 v[20:23], v28 offset:9216
    ds_read_b128 v[24:27], v28 offset:{9216+16}
    s_waitcnt lgkmcnt(0)
    v_max3_f32 v12, v12, v13, v14
    v_max3_f32 v12, v12, v15, v16
    v_max3_f32 v12, v12, v17, v18
    v_max_f32 v12, v12, v19
    """)
    sum_tree(a, range(20, 28))
    a(f"""
    v_mov_b32 v13, v20
    v_lshlrev_b32 v28, 9, v1
    s_lshl_b32 s{sT0}, s{sB}, 14
    s_lshl_b32 s{sT1}, s{sSPLIT}, 3
    s_add_u32 s{sT0}, s{sT0}, s{sT1}
    s_add_u32 s{sT0}, s{sT0}, {WS_ML}
    buffer_store_dwordx2 v[12:13], v28, s[{S_WS}:{S_WS+3}], s{sT0} offen sc1
    s_mov_b64 exec, s[{sEX}:{sEX+1}]
    """)
    a.label("b_st_done")
    a("s_waitcnt vmcnt(0)")
    a("s_barrier")
    stamp(a, R, "pre2")
    signal(a, 1)
    a("s_barrier")
    stamp(a, R, "sig2")
    ffn_b(a)
    stamp(a, R, "ffn")
    if STAMP:
        a(f"s_cmp_ge_u32 s{sT3}, 36")
        a("s_cbranch_scc0 b_p4")
        stamp_dump(a)
        a("s_endpgm")
        a.label("b_p4")
    else:
        a(f"""
        s_cmp_ge_u32 s{sT3}, 36
        s_cbranch_scc1 k_end
        """)
    LP_SM = 65536 - 256
    a(f"""
    s_cmp_ge_u32 s{sT3}, 18
    s_cselect_b32 s{sB}, 1, 0
    s_mul_i32 s{sJ}, s{sB}, 18
    s_sub_u32 s{sJ}, s{sT3}, s{sJ}
    s_cmp_lg_u32 s{sWAVE}, 4
    s_cbranch_scc1 p4_nogate
    v_mov_b32 v60, 0
    v_lshlrev_b32 v4, 5, v1
    s_mul_i32 s{sT0}, s{sB}, 1152
    v_cmp_gt_u32 vcc, 36, v1
    s_and_saveexec_b64 s[{sEX}:{sEX+1}], vcc
    buffer_load_dwordx4 v[64:67], v4, s[{S_X}:{S_X+3}], s{sT0} offen
    buffer_load_dwordx4 v[68:71], v4, s[{S_X}:{S_X+3}], s{sT0} offen offset:16
    buffer_load_dwordx4 v[72:75], v4, s[{S_GATE}:{S_GATE+3}], 0 offen
    buffer_load_dwordx4 v[76:79], v4, s[{S_GATE}:{S_GATE+3}], 0 offen offset:16
    s_waitcnt vmcnt(0)
    """)
    for q in range(8):
        a(f"v_lshlrev_b32 v61, 16, v{64+q}")
        a(f"v_lshlrev_b32 v62, 16, v{72+q}")
        a(f"v_mul_f32 v61, v61, v62")
        round_bf16(a, 61)
        a(f"v_add_f32 v60, v60, v61")
        a(f"v_and_b32 v61, 0xffff0000, v{64+q}")
        a(f"v_and_b32 v62, 0xffff0000, v{72+q}")
        a(f"v_mul_f32 v61, v61, v62")
        round_bf16(a, 61)
        a(f"v_add_f32 v60, v60, v61")
    a(f"s_mov_b64 exec, s[{sEX}:{sEX+1}]")
    wave_reduce(a, "v_add_f32", 60, 61)
    round_bf16(a, 60)
    a(f"""
    v_mul_f32 v60, {f32bits(-1.4426950408889634)}, v60
    v_exp_f32 v60, v60
    s_nop 0
    v_add_f32 v60, 1.0, v60
    v_rcp_f32 v60, v60
    s_nop 0
    """)
    round_bf16(a, 60)
    a(f"""
    v_mov_b32 v4, 0
    ds_write_b32 v4, v60 offset:{LP_SM}
    s_waitcnt lgkmcnt(0)
    """)
    a.label("p4_nogate")
    a(f"""
    s_cmp_lg_u32 s{sWAVE}, 8
    s_cbranch_scc1 p4_nn
    v_mov_b32 v4, 0
    v_mov_b32 v5, s{sNONCE}
    ds_write_b32 v4, v5 offset:{LP_SM+16}
    s_waitcnt lgkmcnt(0)
    p4_nn:
    v_and_b32 v62, 31, v1
    v_lshlrev_b32 v62, 1, v62
    s_lshl_b32 s{sT1}, s{sJ}, 6
    buffer_load_ushort v63, v62, s[{S_B2}:{S_B2+3}], s{sT1} offen
    """)
    poll(a, 4)
    skip_if_wave_ge(a, 8, "p4_ld_skip")
    a(f"""
    v_mov_b32 v4, 0
    ds_read_b32 v5, v4 offset:{LP_SM+16}
    v_lshrrev_b32 v2, 3, v0
    v_and_b32 v3, 7, v0
    v_mul_u32_u24 v4, 4608, v2
    v_lshl_add_u32 v4, v3, 4, v4
    s_mul_i32 s{sT0}, s{sB}, 2304
    s_lshl_b32 s{sT1}, s{sJ}, 7
    s_add_u32 s{sT0}, s{sT0}, s{sT1}
    """)
    for u in range(2):
        a(f"buffer_load_dwordx4 v[{48+4*u}:{51+4*u}], v4, s[{S_FP}:{S_FP+3}], s{sT0} offen sc1")
        a(f"s_add_u32 s{sT0}, s{sT0}, {64*4608}")
    a(f"""
    v_lshrrev_b32 v6, 4, v0
    v_and_b32 v7, 15, v0
    v_mul_u32_u24 v9, 9216, v6
    v_lshl_add_u32 v9, v7, 4, v9
    s_mul_i32 s{sT0}, s{sB}, 4608
    s_lshl_b32 s{sT1}, s{sJ}, 8
    s_add_u32 s{sT0}, s{sT0}, s{sT1}
    s_add_u32 s{sT0}, s{sT0}, {WS_AP}
    s_mov_b32 s{sCNT}, 0
    s_waitcnt lgkmcnt(0)
    """)
    a.label("e3v_retry")
    a(f"s_mov_b32 s{sT2}, s{sT0}")
    for u in range(4):
        a(f"buffer_load_dwordx4 v[{16+4*u}:{19+4*u}], v9, s[{S_WS}:{S_WS+3}], s{sT2} offen sc1")
        a(f"s_add_u32 s{sT2}, s{sT2}, {32*9216}")
    a("s_waitcnt vmcnt(0)")
    for i in range(8):
        a(f"v_xor_b32 v{17+2*i}, v{17+2*i}, v5")
    a("""
    v_or3_b32 v17, v17, v19, v21
    v_or3_b32 v23, v23, v25, v27
    v_or3_b32 v17, v17, v29, v31
    v_or_b32 v17, v17, v23
    v_cmp_ne_u32 vcc, 0, v17
    """)
    retry_tail(a, "e3v")
    stamp(a, R, "e3")
    a(f"""
    v_add_f32 v16, v16, v20
    v_add_f32 v24, v24, v28
    v_add_f32 v16, v16, v24
    v_add_f32 v18, v18, v22
    v_add_f32 v26, v26, v30
    v_add_f32 v17, v18, v26
    v_add_f32 v48, v48, v52
    v_add_f32 v49, v49, v53
    v_add_f32 v50, v50, v54
    v_add_f32 v51, v51, v55
    s_nop 1
    v_add_f32_dpp v48, v48, v48 row_ror:8 row_mask:0xf bank_mask:0xf
    v_add_f32_dpp v49, v49, v49 row_ror:8 row_mask:0xf bank_mask:0xf
    v_add_f32_dpp v50, v50, v50 row_ror:8 row_mask:0xf bank_mask:0xf
    v_add_f32_dpp v51, v51, v51 row_ror:8 row_mask:0xf bank_mask:0xf
    """)
    regs = [16, 17, 48, 49, 50, 51]
    tmps = [20, 21, 22, 23, 24, 25]
    for op in ("v_permlane16_swap_b32", "v_permlane32_swap_b32"):
        for r, t in zip(regs, tmps):
            a(f"v_mov_b32 v{t}, v{r}")
        a("s_nop 1")
        for r, t in zip(regs, tmps):
            a(f"{op} v{r}, v{t}")
        a("s_nop 1")
        for r, t in zip(regs, tmps):
            a(f"v_add_f32 v{r}, v{r}, v{t}")
    a(f"""
    s_lshl_b32 s{sT2}, s{sWAVE}, 7
    v_lshlrev_b32 v4, 3, v7
    v_add_u32 v4, s{sT2}, v4
    ds_write_b64 v4, v[16:17] offset:40960
    v_lshlrev_b32 v4, 4, v3
    v_add_u32 v4, s{sT2}, v4
    ds_write_b128 v4, v[48:51] offset:49152
    s_waitcnt lgkmcnt(0)
    """)
    a.label("p4_ld_skip")
    a(f"""
    s_barrier
    s_cmp_lg_u32 s{sWAVE}, 0
    s_cbranch_scc1 p4_end
    v_and_b32 v4, 31, v1
    v_lshlrev_b32 v4, 2, v4
    v_mov_b32 v3, 0
    """)
    for g in range(8):
        a(f"ds_read_b32 v{16+g}, v4 offset:{40960+g*128}")
    for g in range(8):
        a(f"ds_read_b32 v{64+g}, v4 offset:{49152+g*128}")
    a(f"""
    ds_read_b32 v60, v3 offset:{LP_SM}
    v_mov_b32 v7, v62
    s_lshl_b32 s{sT1}, s{sJ}, 6
    s_waitcnt lgkmcnt(0)
    """)
    sum_tree(a, range(16, 24))
    sum_tree(a, range(64, 72))
    round_bf16(a, 16)
    a("v_mov_b32 v17, v64")
    round_bf16(a, 17)
    a("""
    v_lshlrev_b32 v8, 16, v63
    v_add_f32 v17, v17, v8
    """)
    round_bf16(a, 17)
    a("v_mul_f32 v16, v60, v16")
    round_bf16(a, 16)
    a("v_sub_f32 v18, 1.0, v60")
    round_bf16(a, 18)
    a("v_mul_f32 v17, v18, v17")
    round_bf16(a, 17)
    a(f"""
    v_add_f32 v16, v16, v17
    v_cvt_pk_bf16_f32 v16, v16, v16
    s_mul_i32 s{sT0}, s{sB}, 1152
    s_add_u32 s{sT0}, s{sT0}, s{sT1}
    v_cmp_gt_u32 vcc, 32, v1
    s_and_saveexec_b64 s[{sEX}:{sEX+1}], vcc
    buffer_store_short v16, v7, s[{S_OUT}:{S_OUT+3}], s{sT0} offen
    s_mov_b64 exec, s[{sEX}:{sEX+1}]
    """)
    a.label("p4_end")
    stamp(a, R, "end")
    stamp_dump(a)


def gen(a):
    name = NAME + "_kernel"
    a.raw(".text")
    a.raw(f".globl {name}")
    a.raw(".p2align 8")
    a.raw(f".type {name},@function")
    a.label(name)
    a(f"""
    s_cmp_ge_u32 s2, 256
    s_cbranch_scc1 k_end
    s_load_dwordx2 s[{S_X}:{S_X+1}], s[0:1], 0
    s_load_dwordx2 s[{S_CKV}:{S_CKV+1}], s[0:1], 8
    s_load_dwordx2 s[{S_WQ}:{S_WQ+1}], s[0:1], 16
    s_load_dwordx2 s[{S_WUK}:{S_WUK+1}], s[0:1], 24
    s_load_dwordx2 s[{S_WUV}:{S_WUV+1}], s[0:1], 32
    s_load_dwordx2 s[{S_WO}:{S_WO+1}], s[0:1], 40
    s_load_dwordx2 s[{S_W1}:{S_W1+1}], s[0:1], 56
    s_load_dwordx2 s[{S_B1}:{S_B1+1}], s[0:1], 64
    s_load_dwordx2 s[{S_W2}:{S_W2+1}], s[0:1], 72
    s_load_dwordx2 s[{S_B2}:{S_B2+1}], s[0:1], 80
    s_load_dwordx2 s[{S_GATE}:{S_GATE+1}], s[0:1], 88
    s_load_dwordx2 s[{S_OUT}:{S_OUT+1}], s[0:1], 96
    s_load_dwordx2 s[{S_DBG}:{S_DBG+1}], s[0:1], 104
    s_load_dwordx2 s[{S_WS}:{S_WS+1}], s[0:1], 112
    s_load_dwordx2 s[{S_FP}:{S_FP+1}], s[0:1], 112
    """)
    srd(a, S_X, 2304); srd(a, S_CKV, 16777216); srd(a, S_WQ, 4718592); srd(a, S_WUK, 4194304)
    srd(a, S_WUV, 4194304); srd(a, S_WO, 4718592); srd(a, S_W1, 5308416); srd(a, S_B1, 9216)
    srd(a, S_W2, 5308416); srd(a, S_B2, 1152); srd(a, S_GATE, 1152); srd(a, S_OUT, 2304)
    srd(a, S_DBG, 256); srd(a, S_WS, 268435456); srd(a, S_FP, 72 * 4608)
    a(f"""
    s_mov_b32 s{sLO}, 0x05040100
    s_mov_b32 s{sHI}, 0x07060302
    v_readfirstlane_b32 s{sWAVE}, v0
    s_lshr_b32 s{sWAVE}, s{sWAVE}, 6
    v_and_b32 v1, 63, v0
    s_waitcnt lgkmcnt(0)
    s_add_u32 s{S_FP}, s{S_FP}, {WS_FFNP}
    s_addc_u32 s{S_FP+1}, s{S_FP+1}, 0
    """)
    stamp(a, "A", "start");
    if STAMP:
        STAMPS["B"].append("start")
    a(f"""
    s_cmp_ge_u32 s2, 128
    s_cbranch_scc1 role_b
    s_add_u32 s{sT0}, s2, s{sWAVE}
    s_cmp_lg_u32 s{sT0}, 0
    s_cbranch_scc1 a_nonw
    s_memrealtime s[{sTS}:{sTS+1}]
    v_mov_b32 v14, 0
    s_waitcnt lgkmcnt(0)
    s_or_b32 s{sTS}, s{sTS}, 1
    v_mov_b32 v13, s{sTS}
    buffer_store_dword v13, v14, s[{S_DBG}:{S_DBG+3}], 0 offen sc1
    a_nonw:
    """)
    role_a(a)
    a.label("role_b")
    role_b(a)
    a.label("k_end")
    a("s_endpgm")
    a.raw('.section .rodata,"a"')
    a.raw(".p2align 6")
    a.raw(f".amdhsa_kernel {name}")
    a.raw("  .amdhsa_next_free_vgpr 168")
    a.raw("  .amdhsa_next_free_sgpr 102")
    a.raw("  .amdhsa_accum_offset 168")
    a.raw("  .amdhsa_group_segment_fixed_size 0")
    a.raw("  .amdhsa_kernarg_size 120")
    a.raw("  .amdhsa_user_sgpr_count 2")
    a.raw("  .amdhsa_user_sgpr_kernarg_segment_ptr 1")
    a.raw("  .amdhsa_system_sgpr_workgroup_id_x 1")
    a.raw(".end_amdhsa_kernel")


def main():
    out = sys.argv[1] if len(sys.argv) > 1 else f"cdna_kernels/{NAME}.s"
    hdr = open(f"cdna_kernels/{NAME}.s.ref").read().split("\n")
    hdr = [l for l in hdr if l.startswith(";") and "@launch" not in l]
    a = A()
    for l in hdr:
        a.raw(l)
    a.raw(f"; @launch grid=(256,1,1) block=(576,1,1) lds={LDS_TOTAL}")
    a.raw('.amdgcn_target "amdgcn-amd-amdhsa--gfx950"')
    gen(a)
    open(out, "w").write(a.text())
    if STAMP:
        print(STAMPS)


main()
```

```python
import sys, os, struct

NAME = "gated_mix__compressed_kv_cla__dense_activation_squared_relu__decode"
STAMP = int(os.environ.get("STAMP", "0"))
WQPOL = os.environ.get("WQPOL", "nt")
BDELAY = os.environ.get("BDELAY", "nonce")
WOPOL = os.environ.get("WOPOL", "nt")

WS_QA = 0
WS_ML = 0x80000
WS_FFNP = 0x100000
WS_AP = 0x200000
WS_TS = 0x400000
WS_QP = 0xA0000
WS_FL = 0xF0000
WS_OP = 0x1000000

SCALE_LOG2 = (128 ** -0.5) * 1.4426950408889634
SPIN_MAX = 200000


def f32bits(x):
    return struct.unpack("<I", struct.pack("<f", x))[0]


class A:
    def __init__(self):
        self.l = []
        self.n = 0
    def __call__(self, s):
        for line in s.strip("\n").split("\n"):
            if line.strip():
                self.l.append("    " + line.strip())
    def label(self, s):
        self.l.append(s + ":")
    def raw(self, s):
        self.l.append(s)
    def uniq(self, p):
        self.n += 1
        return f"{p}_{self.n}"
    def text(self):
        return "\n".join(self.l) + "\n"


S_X, S_CKV, S_WQ, S_WUK, S_WUV, S_WO, S_W1, S_B1, S_W2, S_B2, S_GATE, S_OUT, S_DBG, S_WS, S_FP = \
    4, 8, 12, 16, 20, 24, 28, 32, 36, 40, 44, 48, 52, 56, 60
sWAVE, sH, sJ, sB, sSPLIT, sLO, sHI, sT0, sT1, sT2, sT3, sF, sCNT = 64, 65, 66, 67, 68, 69, 70, 72, 73, 74, 75, 76, 77
sEX = 78
sTS = 80
sNONCE = 71
sIDX = 3
sQA = 68

LDS_TOTAL = 163840
LA_SM = 0
LA_R1 = 2048
LA_R2 = 40960
LB_C = 0
LB_R = 131072
OROW = 1040


def srd(a, s, size):
    a(f"s_mov_b32 s{s+2}, {size}")
    a(f"s_mov_b32 s{s+3}, 0x00020000")


def dot_rows(a, W, nrows, X, acc, tmp, waits=None):
    for p in range(nrows // 2):
        if waits is not None and waits[p] is not None:
            a(f"s_waitcnt vmcnt({waits[p]})")
        for q in range(4):
            r0 = W + 4 * (2 * p) + q
            r1 = W + 4 * (2 * p + 1) + q
            a(f"v_perm_b32 v{tmp}, v{r1}, v{r0}, s{sLO}")
            a(f"v_perm_b32 v{tmp+1}, v{r1}, v{r0}, s{sHI}")
            for b in range(len(X)):
                a(f"v_dot2c_f32_bf16 v{acc[b]+2*q}, v{tmp}, v{X[b]+p}")
                a(f"v_dot2c_f32_bf16 v{acc[b]+2*q+1}, v{tmp+1}, v{X[b]+p}")


def sum_tree(a, regs):
    regs = list(regs)
    while len(regs) > 1:
        nxt = []
        for i in range(0, len(regs) - 1, 2):
            a(f"v_add_f32 v{regs[i]}, v{regs[i]}, v{regs[i+1]}")
            nxt.append(regs[i])
        if len(regs) % 2:
            nxt.append(regs[-1])
        regs = nxt


def round_bf16(a, v):
    a(f"v_cvt_pk_bf16_f32 v{v}, v{v}, v{v}")
    a(f"v_lshlrev_b32 v{v}, 16, v{v}")


def xrow_reduce(a, op, v, t):
    a(f"v_mov_b32 v{t}, v{v}")
    a("s_nop 1")
    a(f"v_permlane16_swap_b32 v{v}, v{t}")
    a("s_nop 1")
    a(f"{op} v{v}, v{v}, v{t}")
    a(f"v_mov_b32 v{t}, v{v}")
    a("s_nop 1")
    a(f"v_permlane32_swap_b32 v{v}, v{t}")
    a("s_nop 1")
    a(f"{op} v{v}, v{v}, v{t}")


def wave_reduce(a, op, v, t):
    for m in ("quad_perm:[1,0,3,2]", "quad_perm:[2,3,0,1]", "row_half_mirror", "row_mirror"):
        a("s_nop 1")
        a(f"{op}_dpp v{v}, v{v}, v{v} {m} row_mask:0xf bank_mask:0xf")
    xrow_reduce(a, op, v, t)


def skip_if_wave_ge(a, n, label):
    a(f"s_cmp_ge_u32 s{sWAVE}, {n}")
    a(f"s_cbranch_scc1 {label}")


STAMPS = {"A": [], "B": []}
def stamp(a, role, name):
    if not STAMP:
        return
    STAMPS[role].append(name)
    idx = len(STAMPS[role]) - 1
    a(f"s_memrealtime s[{sTS}:{sTS+1}]")
    a(f"s_waitcnt lgkmcnt(0)")
    a(f"s_mov_b32 s{82+idx}, s{sTS}")


DBGDUMP = int(os.environ.get("DBGDUMP", "0"))
def stamp_dump(a):
    if not STAMP:
        return
    if DBGDUMP:
        l = a.uniq("dd")
        a(f"s_cmp_lg_u32 s{sWAVE}, 0")
        a(f"s_cbranch_scc1 {l}")
        a(f"v_mov_b32 v4, 0")
        a(f"s_cmp_lg_u32 s2, 5")
        a(f"s_cbranch_scc1 {l}_b")
        for k, i in enumerate([2, 4, 6, 7, 8, 9, 12]):
            a(f"s_sub_u32 s{sT3}, s{82+i}, s82")
            a(f"v_mov_b32 v2, s{sT3}")
            a(f"buffer_store_dword v2, v4, s[{S_DBG}:{S_DBG+3}], 0 offen offset:{4+4*k}")
        a.label(f"{l}_b")
        a(f"s_cmp_lg_u32 s2, 133")
        a(f"s_cbranch_scc1 {l}")
        for k, i in enumerate([1, 2, 3, 4, 6, 8, 10, 11]):
            a(f"s_sub_u32 s{sT3}, s{82+i}, s82")
            a(f"v_mov_b32 v2, s{sT3}")
            a(f"buffer_store_dword v2, v4, s[{S_DBG}:{S_DBG+3}], 0 offen offset:{32+4*k}")
        a.label(l)
        return
    a(f"v_mov_b32 v4, 0")
    a(f"v_mov_b32 v3, 0")
    a(f"s_mul_i32 s{sT3}, s2, 9")
    a(f"s_add_u32 s{sT3}, s{sT3}, s{sWAVE}")
    a(f"s_lshl_b32 s{sT3}, s{sT3}, 8")
    a(f"s_add_u32 s{sT3}, s{sT3}, {WS_TS}")
    for i in range(19):
        a(f"v_mov_b32 v2, s{82+i}")
        a(f"buffer_store_dwordx2 v[2:3], v4, s[{S_WS}:{S_WS+3}], s{sT3} offen offset:{i*8}")
        a("s_nop 1")


def signal(a, e):
    l = a.uniq("sig")
    a(f"s_cmp_lg_u32 s{sWAVE}, 8")
    a(f"s_cbranch_scc1 {l}")
    a(f"s_lshl_b32 s{sT0}, s{sIDX}, 2")
    a(f"s_add_u32 s{sT0}, s{sT0}, {WS_FL + e*8192}")
    a(f"v_mov_b32 v2, s{sNONCE}")
    a(f"v_lshlrev_b32 v3, 10, v1")
    a(f"v_cmp_gt_u32 vcc, 8, v1")
    a(f"s_and_saveexec_b64 s[{sEX}:{sEX+1}], vcc")
    a(f"buffer_store_dword v2, v3, s[{S_WS}:{S_WS+3}], s{sT0} offen sc1")
    a(f"s_mov_b64 exec, s[{sEX}:{sEX+1}]")
    a.label(l)


def poll(a, e):
    l = a.uniq("poll")
    a(f"s_cmp_lg_u32 s{sWAVE}, 8")
    a(f"s_cbranch_scc1 {l}_done")
    a(f"v_and_b32 v2, 31, v1")
    a(f"v_lshlrev_b32 v2, 4, v2")
    a(f"s_and_b32 s{sT0}, s2, 7")
    a(f"s_lshl_b32 s{sT0}, s{sT0}, 10")
    a(f"s_add_u32 s{sT0}, s{sT0}, {WS_FL + e*8192}")
    a(f"s_mov_b32 s{sCNT}, 0")
    a.label(f"{l}_loop")
    a(f"buffer_load_dwordx4 v[12:15], v2, s[{S_WS}:{S_WS+3}], s{sT0} offen sc1")
    a(f"s_add_u32 s{sCNT}, s{sCNT}, 1")
    a(f"s_waitcnt vmcnt(0)")
    a(f"v_xor_b32 v12, s{sNONCE}, v12")
    a(f"v_xor_b32 v13, s{sNONCE}, v13")
    a(f"v_xor_b32 v14, s{sNONCE}, v14")
    a(f"v_xor_b32 v15, s{sNONCE}, v15")
    a(f"v_or3_b32 v12, v12, v13, v14")
    a(f"v_or_b32 v12, v12, v15")
    a(f"v_cmp_ne_u32 vcc, 0, v12")
    a(f"s_cmp_ge_u32 s{sCNT}, {SPIN_MAX}")
    a(f"s_cbranch_scc1 {l}_done")
    a(f"s_cbranch_vccnz {l}_loop")
    a.label(f"{l}_done")
    a("s_barrier")


def any_sentinel(a, regs, t):
    regs = list(regs)
    a(f"v_max3_u32 v{t}, v{regs[0]}, v{regs[1]}, v{regs[2]}")
    i = 3
    while i + 1 < len(regs):
        a(f"v_max3_u32 v{t}, v{t}, v{regs[i]}, v{regs[i+1]}")
        i += 2
    if i < len(regs):
        a(f"v_max_u32 v{t}, v{t}, v{regs[i]}")
    a(f"v_cmp_eq_u32 vcc, -1, v{t}")


def retry_tail(a, l):
    a(f"s_add_u32 s{sCNT}, s{sCNT}, 1")
    a(f"s_cmp_ge_u32 s{sCNT}, {SPIN_MAX}")
    a(f"s_cbranch_scc1 {l}_ok")
    a(f"s_cbranch_vccnz {l}_retry")
    a.label(f"{l}_ok")


def nonce_wait(a, first_issued):
    l = a.uniq("nw")
    a(f"s_mov_b32 s{sCNT}, 0")
    a(f"v_mov_b32 v14, 0")
    if first_issued:
        a(f"s_branch {l}_chk")
    a.label(f"{l}_loop")
    a(f"buffer_load_dword v13, v14, s[{S_DBG}:{S_DBG+3}], 0 offen sc1")
    a.label(f"{l}_chk")
    a(f"s_add_u32 s{sCNT}, s{sCNT}, 1")
    a(f"s_waitcnt vmcnt(0)")
    a(f"v_readfirstlane_b32 s{sNONCE}, v13")
    a(f"s_cmp_ge_u32 s{sCNT}, {SPIN_MAX}")
    a(f"s_cbranch_scc1 {l}_done")
    a(f"s_cmp_eq_u32 s{sNONCE}, 0")
    a(f"s_cbranch_scc1 {l}_loop")
    a.label(f"{l}_done")


def role_a(a):
    R = "A"
    a(f"""
    s_and_b32 s{sH}, s2, 7
    s_lshr_b32 s{sT0}, s2, 3
    s_and_b32 s{sT0}, s{sT0}, 3
    s_lshl_b32 s{sT0}, s{sT0}, 3
    s_add_u32 s{sH}, s{sH}, s{sT0}
    s_lshr_b32 s{sJ}, s2, 5
    s_mov_b32 s{sIDX}, s2
    v_lshrrev_b32 v5, 4, v0
    v_and_b32 v6, 15, v0
    v_lshrrev_b32 v7, 4, v1
    v_mul_u32_u24 v10, 911, v0
    v_lshrrev_b32 v10, 16, v10
    v_mul_u32_u24 v11, 72, v10
    v_sub_u32 v11, v0, v11
    v_lshlrev_b32 v8, 13, v6
    v_lshl_add_u32 v8, v7, 4, v8
    s_lshl_b32 s{sT0}, s{sJ}, 7
    s_lshl_b32 s{sT1}, s{sWAVE}, 4
    s_add_u32 s{sT0}, s{sT0}, s{sT1}
    s_lshl_b32 s{sT0}, s{sT0}, 13
    s_lshl_b32 s{sT1}, s{sH}, 8
    s_add_u32 s{sT0}, s{sT0}, s{sT1}
    s_mov_b32 s{sF}, s{sT0}
    v_lshlrev_b32 v4, 3, v5
    s_mul_i32 s{sT1}, s{sJ}, 288
    v_lshlrev_b32 v3, 15, v5
    v_lshl_add_u32 v3, v6, 4, v3
    s_mul_i32 s{sT0}, s{sJ}, {144*8192}
    s_lshl_b32 s{sT2}, s{sH}, 8
    s_add_u32 s{sT0}, s{sT0}, s{sT2}
    buffer_load_dwordx2 v[128:129], v4, s[{S_X}:{S_X+3}], s{sT1} offen
    buffer_load_dwordx2 v[136:137], v4, s[{S_X}:{S_X+3}], s{sT1} offen offset:1152
    """)
    for i in range(4):
        a(f"buffer_load_dwordx4 v[{64+4*i}:{67+4*i}], v3, s[{S_WQ}:{S_WQ+3}], s{sT0} offen nt")
        if i < 3:
            a(f"s_add_u32 s{sT0}, s{sT0}, 8192")
    a(f"""
    v_mov_b32 v14, 0
    s_cmp_lg_u32 s{sWAVE}, 8
    s_cbranch_scc1 a0_non
    buffer_load_dword v13, v14, s[{S_DBG}:{S_DBG+3}], 0 offen sc1
    a0_non:
    """)
    a(f"""
    s_lshl_b32 s{sQA}, s{sJ}, 2
    s_and_b32 s{sT2}, s{sWAVE}, 7
    s_lshr_b32 s{sT1}, s{sT2}, 1
    s_add_u32 s{sQA}, s{sQA}, s{sT1}
    s_lshl_b32 s{sQA}, s{sQA}, 1
    s_lshr_b32 s{sT1}, s{sH}, 4
    s_add_u32 s{sQA}, s{sQA}, s{sT1}
    s_lshl_b32 s{sQA}, s{sQA}, 6
    s_and_b32 s{sT1}, s{sT2}, 1
    s_lshl_b32 s{sT1}, s{sT1}, 5
    s_add_u32 s{sQA}, s{sQA}, s{sT1}
    s_and_b32 s{sT1}, s{sH}, 15
    s_add_u32 s{sQA}, s{sQA}, s{sT1}
    s_lshl_b32 s{sQA}, s{sQA}, 4
    v_lshlrev_b32 v9, 15, v6
    v_lshrrev_b32 v2, 1, v7
    v_lshl_add_u32 v9, v2, 8, v9
    v_and_b32 v2, 1, v7
    v_lshl_add_u32 v9, v2, 3, v9
    """)
    for i in range(16):
        a(f"v_mov_b32 v{144+i}, 0")
    dot_rows(a, 64, 4, [128, 136], [144, 152], 20, waits=[2, 0])
    stamp(a, R, "dot")
    a(f"""
    s_nop 3
    v_lshlrev_b32 v4, 10, v5
    v_lshl_add_u32 v4, v6, 5, v4
    ds_write_b128 v4, v[144:147] offset:{LA_R1}
    ds_write_b128 v4, v[148:151] offset:{LA_R1+16}
    ds_write_b128 v4, v[152:155] offset:{LA_R1+512}
    ds_write_b128 v4, v[156:159] offset:{LA_R1+528}
    s_cmp_lg_u32 s{sWAVE}, 8
    s_cbranch_scc1 a1_non
    """)
    nonce_wait(a, True)
    a(f"ds_write_b32 v14, v13 offset:{LA_SM+1024}")
    a.label("a1_non")
    a("""
    s_waitcnt lgkmcnt(0)
    s_barrier
    """)
    a(f"""
    v_mov_b32 v14, 0
    ds_read_b32 v13, v14 offset:{LA_SM+1024}
    s_waitcnt lgkmcnt(0)
    v_readfirstlane_b32 s{sNONCE}, v13
    """)
    stamp(a, R, "bar1")
    if BDELAY == "flag":
        signal(a, 3)
    skip_if_wave_ge(a, 4, "a1_skip_pub")
    a("v_lshlrev_b32 v4, 2, v0")
    for g in range(36):
        a(f"ds_read_b32 v{80+g}, v4 offset:{LA_R1+g*1024}")
    a("s_waitcnt lgkmcnt(0)")
    sum_tree(a, range(80, 116))
    a(f"""
    v_mov_b32 v12, v80
    v_lshlrev_b32 v4, 3, v0
    s_lshl_b32 s{sT0}, s{sH}, 13
    s_add_u32 s{sT0}, s{sT0}, {WS_QP}
    s_lshl_b32 s{sT1}, s{sJ}, 11
    s_add_u32 s{sT1}, s{sT1}, s{sT0}
    buffer_store_dwordx2 v[12:13], v4, s[{S_WS}:{S_WS+3}], s{sT1} offen sc1
    s_mov_b32 s{sCNT}, 0
    """)
    a.label("a1_skip_pub")
    a("s_barrier")
    stamp(a, R, "pub")
    a(f"""
    s_cmp_ge_u32 s{sWAVE}, 8
    s_cbranch_scc1 a0_nowuk
    buffer_load_dwordx4 v[48:51], v8, s[{S_WUK}:{S_WUK+3}], s{sF} offen nt
    buffer_load_dwordx4 v[52:55], v8, s[{S_WUK}:{S_WUK+3}], s{sF} offen offset:64 nt
    buffer_load_dwordx4 v[56:59], v8, s[{S_WUK}:{S_WUK+3}], s{sF} offen offset:128 nt
    buffer_load_dwordx4 v[60:63], v8, s[{S_WUK}:{S_WUK+3}], s{sF} offen offset:192 nt
    a0_nowuk:
    """)
    skip_if_wave_ge(a, 4, "a1_skip_red")
    a.label("qx_retry")
    a(f"""
    buffer_load_dwordx2 v[16:17], v4, s[{S_WS}:{S_WS+3}], s{sT0} offen sc1
    buffer_load_dwordx2 v[18:19], v4, s[{S_WS}:{S_WS+3}], s{sT0} offen offset:2048 sc1
    s_add_u32 s{sT1}, s{sT0}, 4096
    buffer_load_dwordx2 v[20:21], v4, s[{S_WS}:{S_WS+3}], s{sT1} offen sc1
    buffer_load_dwordx2 v[22:23], v4, s[{S_WS}:{S_WS+3}], s{sT1} offen offset:2048 sc1
    s_waitcnt vmcnt(0)
    v_xor_b32 v17, v17, v13
    v_xor_b32 v19, v19, v13
    v_xor_b32 v21, v21, v13
    v_xor_b32 v23, v23, v13
    v_or3_b32 v17, v17, v19, v21
    v_or_b32 v17, v17, v23
    v_cmp_ne_u32 vcc, 0, v17
    """)
    retry_tail(a, "qx")
    a(f"""
    v_add_f32 v16, v16, v18
    v_add_f32 v20, v20, v22
    v_add_f32 v16, v16, v20
    v_cvt_pk_bf16_f32 v16, v16, v16
    v_lshlrev_b32 v4, 1, v0
    ds_write_b16 v4, v16 offset:{LA_SM}
    s_waitcnt lgkmcnt(0)
    """)
    a.label("a1_skip_red")
    a("s_barrier")
    stamp(a, R, "qred")
    skip_if_wave_ge(a, 8, "a1_done")
    for i in range(20):
        a(f"v_mov_b32 v{16+i}, 0")
    a(f"""
    v_lshlrev_b32 v8, 8, v6
    v_lshl_add_u32 v8, v7, 4, v8
    v_cmp_gt_u32 vcc, 2, v6
    s_and_saveexec_b64 s[{sEX}:{sEX+1}], vcc
    ds_read_b128 v[16:19], v8 offset:{LA_SM}
    ds_read_b128 v[20:23], v8 offset:{LA_SM+64}
    ds_read_b128 v[24:27], v8 offset:{LA_SM+128}
    ds_read_b128 v[28:31], v8 offset:{LA_SM+192}
    s_mov_b64 exec, s[{sEX}:{sEX+1}]
    s_waitcnt vmcnt(0) lgkmcnt(0)
    s_nop 4
    v_mfma_f32_16x16x32_bf16 v[32:35], v[48:51], v[16:19], v[32:35]
    v_mfma_f32_16x16x32_bf16 v[32:35], v[52:55], v[20:23], v[32:35]
    v_mfma_f32_16x16x32_bf16 v[32:35], v[56:59], v[24:27], v[32:35]
    v_mfma_f32_16x16x32_bf16 v[32:35], v[60:63], v[28:31], v[32:35]
    s_nop 7
    s_nop 1
    v_cvt_pk_bf16_f32 v36, v32, v33
    v_cvt_pk_bf16_f32 v37, v34, v35
    v_lshlrev_b32 v9, 8, v6
    v_lshl_add_u32 v9, v7, 3, v9
    s_lshl_b32 s{sT1}, s{sWAVE}, 5
    v_add_u32 v9, s{sT1}, v9
    v_cmp_gt_u32 vcc, 2, v6
    s_and_saveexec_b64 s[{sEX}:{sEX+1}], vcc
    ds_write_b64 v9, v[36:37] offset:{LA_SM+512}
    s_mov_b64 exec, s[{sEX}:{sEX+1}]
    s_waitcnt lgkmcnt(0)
    """)
    a.label("a1_done")
    a("s_barrier")
    stamp(a, R, "pre1")
    a(f"""
    s_cmp_lg_u32 s{sWAVE}, 8
    s_cbranch_scc1 a1_nost
    v_and_b32 v2, 31, v1
    v_lshlrev_b32 v3, 4, v2
    ds_read_b128 v[16:19], v3 offset:{LA_SM+512}
    v_lshrrev_b32 v4, 4, v2
    v_lshlrev_b32 v4, 15, v4
    v_and_b32 v2, 15, v2
    v_lshl_add_u32 v4, v2, 4, v4
    s_lshl_b32 s{sT0}, s{sH}, 10
    s_lshl_b32 s{sT1}, s{sJ}, 8
    s_add_u32 s{sT0}, s{sT0}, s{sT1}
    v_cmp_gt_u32 vcc, 32, v1
    s_and_saveexec_b64 s[{sEX}:{sEX+1}], vcc
    s_waitcnt lgkmcnt(0)
    buffer_store_dwordx4 v[16:19], v4, s[{S_WS}:{S_WS+3}], s{sT0} offen sc1
    s_mov_b64 exec, s[{sEX}:{sEX+1}]
    s_waitcnt vmcnt(0)
    a1_nost:
    """)
    signal(a, 0)
    a("s_barrier")
    stamp(a, R, "sig1")
    skip_if_wave_ge(a, 8, "a_nowuv")
    a(f"""
    v_lshlrev_b32 v8, 13, v7
    v_lshl_add_u32 v8, v6, 4, v8
    s_lshl_b32 s{sT0}, s{sJ}, 20
    s_lshl_b32 s{sT1}, s{sH}, 8
    s_add_u32 s{sT0}, s{sT0}, s{sT1}
    s_lshl_b32 s{sT1}, s{sWAVE}, 17
    s_add_u32 s{sT0}, s{sT0}, s{sT1}
    s_lshl_b32 s{sT1}, s{sWAVE}, 12
    """)
    for u in range(4):
        a(f"s_mov_b32 m0, s{sT1}")
        a(f"s_add_u32 s{sT1}, s{sT1}, 1024")
        a(f"buffer_load_dwordx4 v8, s[{S_WUV}:{S_WUV+3}], s{sT0} offen nt lds")
        a(f"s_add_u32 s{sT0}, s{sT0}, 32768")
    a.label("a_nowuv")
    a(f"""
    v_lshlrev_b32 v8, 4, v1
    s_mul_i32 s{sT0}, s{sH}, 147456
    s_mul_i32 s{sT1}, s{sWAVE}, 12288
    s_add_u32 s{sT1}, s{sT1}, 36864
    s_add_u32 s{sT0}, s{sT0}, s{sT1}
    """)
    for u in range(12):
        a(f"s_mov_b32 m0, s{sT1}")
        a(f"s_add_u32 s{sT1}, s{sT1}, 1024")
        a(f"buffer_load_dwordx4 v8, s[{S_WO}:{S_WO+3}], s{sT0} offen {WOPOL} lds")
        a(f"s_add_u32 s{sT0}, s{sT0}, 1024")
    a("s_waitcnt vmcnt(12)")
    a("s_barrier")
    a(f"""
    v_lshrrev_b32 v2, 2, v6
    v_lshl_add_u32 v2, v7, 3, v2
    v_and_b32 v3, 3, v1
    v_lshlrev_b32 v3, 3, v3
    """)
    skip_if_wave_ge(a, 8, "a_nowuv2")
    a(f"""
    v_lshl_add_u32 v4, v2, 8, v3
    s_lshl_b32 s{sT1}, s{sWAVE}, 5
    v_add_u32 v4, s{sT1}, v4
    """)
    for ks in range(4):
        for t in range(2):
            a(f"ds_read_b64_tr_b16 v[{48+4*ks+2*t}:{48+4*ks+2*t+1}], v4 offset:{(ks*32+4*t)*256}")
    a("s_waitcnt lgkmcnt(0)")
    a.label("a_nowuv2")
    a("s_barrier")
    a(f"""
    s_mul_i32 s{sT0}, s{sH}, 147456
    s_lshl_b32 s{sT1}, s{sWAVE}, 12
    s_add_u32 s{sT0}, s{sT0}, s{sT1}
    """)
    for u in range(4):
        a(f"s_mov_b32 m0, s{sT1}")
        a(f"s_add_u32 s{sT1}, s{sT1}, 1024")
        a(f"buffer_load_dwordx4 v8, s[{S_WO}:{S_WO+3}], s{sT0} offen {WOPOL} lds")
        a(f"s_add_u32 s{sT0}, s{sT0}, 1024")
    a(f"""
    v_mul_u32_u24 v4, 1152, v2
    v_add_u32 v4, v4, v3
    s_lshl_b32 s{sT1}, s{sWAVE}, 7
    v_add_u32 v4, s{sT1}, v4
    v_add_u32 v9, {64*1152}, v4
    s_waitcnt vmcnt(0)
    s_barrier
    """)
    for nt in range(4):
        for ks in range(4):
            for t in range(2):
                r = 64 + 16 * nt + 4 * ks + 2 * t
                base = 4 if ks < 2 else 9
                off = ((ks & 1) * 32 + 4 * t) * 1152 + nt * 32
                a(f"ds_read_b64_tr_b16 v[{r}:{r+1}], v{base} offset:{off}")
        a("s_waitcnt lgkmcnt(0)")
    a("s_barrier")
    stamp(a, R, "ffn")
    poll(a, 1)
    stamp(a, R, "e2")
    L3_CC = LA_SM
    L3_PC = LA_SM + 512
    L3_P1 = LA_R1
    skip_if_wave_ge(a, 8, "p3_s1skip")
    a(f"""
    v_lshrrev_b32 v4, 4, v5
    v_lshlrev_b32 v4, 21, v4
    v_and_b32 v12, 15, v5
    v_lshl_add_u32 v4, v12, 12, v4
    v_lshl_add_u32 v4, v6, 4, v4
    s_lshl_b32 s{sT0}, s{sH}, 16
    s_lshl_b32 s{sT1}, s{sJ}, 8
    s_add_u32 s{sT0}, s{sT0}, s{sT1}
    s_add_u32 s{sT0}, s{sT0}, {WS_OP}
    v_lshlrev_b32 v3, 3, v1
    s_lshr_b32 s{sT1}, s{sWAVE}, 2
    s_lshl_b32 s{sT1}, s{sT1}, 5
    s_add_u32 s{sT1}, s{sT1}, s{sH}
    s_lshl_b32 s{sT1}, s{sT1}, 9
    s_add_u32 s{sT1}, s{sT1}, {WS_ML}
    buffer_load_dwordx2 v[32:33], v3, s[{S_WS}:{S_WS+3}], s{sT1} offen sc1
    """)
    for u in range(4):
        a(f"buffer_load_dwordx4 v[{16+4*u}:{19+4*u}], v4, s[{S_WS}:{S_WS+3}], s{sT0} offen offset:{u*1024} sc1")
    a(f"""
    v_lshlrev_b32 v12, 4, v12
    s_waitcnt vmcnt(4)
    v_mov_b32 v36, v32
    """)
    wave_reduce(a, "v_max_f32", 36, 37)
    a("""
    v_sub_f32 v32, v32, v36
    v_exp_f32 v32, v32
    s_nop 0
    v_mul_f32 v36, v32, v33
    """)
    wave_reduce(a, "v_add_f32", 36, 37)
    a(f"""
    v_rcp_f32 v36, v36
    s_nop 0
    v_mul_f32 v36, v32, v36
    ds_bpermute_b32 v32, v12, v36
    ds_bpermute_b32 v33, v12, v36 offset:4
    ds_bpermute_b32 v34, v12, v36 offset:8
    ds_bpermute_b32 v35, v12, v36 offset:12
    s_waitcnt vmcnt(0) lgkmcnt(0)
    """)
    for u in range(4):
        for q in range(4):
            a(f"v_lshlrev_b32 v36, 16, v{16+4*u+q}")
            a(f"v_and_b32 v37, 0xffff0000, v{16+4*u+q}")
            if u == 0:
                a(f"v_mul_f32 v{40+2*q}, v32, v36")
                a(f"v_mul_f32 v{41+2*q}, v32, v37")
            else:
                a(f"v_fmac_f32 v{40+2*q}, v{32+u}, v36")
                a(f"v_fmac_f32 v{41+2*q}, v{32+u}, v37")
    a(f"""
    v_lshlrev_b32 v4, 9, v5
    v_lshl_add_u32 v4, v6, 5, v4
    ds_write_b128 v4, v[40:43] offset:{L3_P1}
    ds_write_b128 v4, v[44:47] offset:{L3_P1+16}
    s_waitcnt lgkmcnt(0)
    """)
    a.label("p3_s1skip")
    a("s_barrier")
    stamp(a, R, "s1")
    skip_if_wave_ge(a, 4, "p3_r1skip")
    a(f"""
    v_and_b32 v4, 127, v0
    v_lshlrev_b32 v4, 2, v4
    v_lshrrev_b32 v12, 7, v0
    v_lshl_add_u32 v4, v12, 13, v4
    """)
    for g in range(16):
        a(f"ds_read_b32 v{16+g}, v4 offset:{L3_P1+g*512}")
    a("s_waitcnt lgkmcnt(0)")
    sum_tree(a, range(16, 32))
    a(f"""
    v_cvt_pk_bf16_f32 v16, v16, v16
    v_lshlrev_b32 v4, 1, v0
    ds_write_b16 v4, v16 offset:{L3_CC}
    s_waitcnt lgkmcnt(0)
    """)
    a.label("p3_r1skip")
    a(f"""
    v_lshlrev_b32 v8, 8, v6
    v_lshl_add_u32 v8, v7, 4, v8
    """)
    for i in range(20):
        a(f"v_mov_b32 v{16+i}, 0")
    a("s_barrier")
    stamp(a, R, "r1")
    skip_if_wave_ge(a, 8, "p3_s2skip")
    a(f"""
    v_cmp_gt_u32 vcc, 2, v6
    s_and_saveexec_b64 s[{sEX}:{sEX+1}], vcc
    ds_read_b128 v[16:19], v8 offset:{L3_CC}
    ds_read_b128 v[20:23], v8 offset:{L3_CC+64}
    ds_read_b128 v[24:27], v8 offset:{L3_CC+128}
    ds_read_b128 v[28:31], v8 offset:{L3_CC+192}
    s_mov_b64 exec, s[{sEX}:{sEX+1}]
    s_waitcnt lgkmcnt(0)
    s_nop 4
    v_mfma_f32_16x16x32_bf16 v[32:35], v[16:19], v[48:51], v[32:35]
    v_mfma_f32_16x16x32_bf16 v[32:35], v[20:23], v[52:55], v[32:35]
    v_mfma_f32_16x16x32_bf16 v[32:35], v[24:27], v[56:59], v[32:35]
    v_mfma_f32_16x16x32_bf16 v[32:35], v[28:31], v[60:63], v[32:35]
    s_lshl_b32 s{sT1}, s{sWAVE}, 5
    v_lshlrev_b32 v4, 1, v1
    v_add_u32 v4, s{sT1}, v4
    s_nop 6
    v_cvt_pk_bf16_f32 v36, v32, v33
    v_cmp_gt_u32 vcc, 16, v1
    s_and_saveexec_b64 s[{sEX}:{sEX+1}], vcc
    ds_write_b16 v4, v36 offset:{L3_PC}
    ds_write_b16_d16_hi v4, v36 offset:{L3_PC+256}
    s_mov_b64 exec, s[{sEX}:{sEX+1}]
    s_waitcnt lgkmcnt(0)
    """)
    a.label("p3_s2skip")
    for i in range(16):
        a(f"v_mov_b32 v{16+i}, 0")
    for i in range(16):
        a(f"v_mov_b32 v{32+i}, 0")
    a("s_barrier")
    stamp(a, R, "s2")
    a(f"""
    v_cmp_gt_u32 vcc, 2, v6
    s_and_saveexec_b64 s[{sEX}:{sEX+1}], vcc
    ds_read_b128 v[16:19], v8 offset:{L3_PC}
    ds_read_b128 v[20:23], v8 offset:{L3_PC+64}
    ds_read_b128 v[24:27], v8 offset:{L3_PC+128}
    ds_read_b128 v[28:31], v8 offset:{L3_PC+192}
    s_mov_b64 exec, s[{sEX}:{sEX+1}]
    s_waitcnt lgkmcnt(0)
    s_nop 4
    """)
    for ks in range(4):
        for nt in range(4):
            r = 64 + 16 * nt + 4 * ks
            a(f"v_mfma_f32_16x16x32_bf16 v[{32+4*nt}:{35+4*nt}], v[{r}:{r+3}], v[{16+4*ks}:{19+4*ks}], v[{32+4*nt}:{35+4*nt}]")
    a(f"""
    v_mul_u32_u24 v4, 2304, v6
    v_lshl_add_u32 v4, v7, 4, v4
    s_lshl_b32 s{sT1}, s{sWAVE}, 8
    v_add_u32 v4, s{sT1}, v4
    s_mul_i32 s{sT0}, s2, 9216
    s_add_u32 s{sT0}, s{sT0}, {WS_AP}
    v_cmp_gt_u32 vcc, 2, v6
    v_lshlrev_b32 v3, 3, v0
    v_lshlrev_b32 v2, 4, v0
    v_mov_b32 v17, s{sNONCE}
    v_mov_b32 v19, s{sNONCE}
    s_and_saveexec_b64 s[{sEX}:{sEX+1}], vcc
    ds_write_b128 v4, v[32:35] offset:{LA_R1}
    ds_write_b128 v4, v[36:39] offset:{LA_R1+64}
    ds_write_b128 v4, v[40:43] offset:{LA_R1+128}
    ds_write_b128 v4, v[44:47] offset:{LA_R1+192}
    s_mov_b64 exec, s[{sEX}:{sEX+1}]
    s_waitcnt lgkmcnt(0)
    s_barrier
    ds_read_b64 v[20:21], v3 offset:{LA_R1}
    s_waitcnt lgkmcnt(0)
    v_mov_b32 v16, v20
    v_mov_b32 v18, v21
    buffer_store_dwordx4 v[16:19], v2, s[{S_WS}:{S_WS+3}], s{sT0} offen sc1
    """)
    stamp(a, R, "s3")
    stamp(a, R, "pre3")
    stamp(a, R, "sig3")
    stamp_dump(a)
    a("s_endpgm")


def ffn_prefetch(a, part):
    l = a.uniq("ffnp")
    if part == 0:
        a(f"""
        s_sub_u32 s{sF}, s{sT3}, 36
        v_mul_u32_u24 v10, 911, v0
        v_lshrrev_b32 v10, 16, v10
        v_mul_u32_u24 v11, 72, v10
        v_sub_u32 v11, v0, v11
        """)
    a(f"""
    s_cmp_ge_u32 s{sF}, 72
    s_cbranch_scc1 {l}
    """)
    if part < 2:
        a(f"""
        v_lshrrev_b32 v5, 3, v0
        v_and_b32 v6, 7, v0
        v_mov_b32 v4, 73728
        v_mul_lo_u32 v4, v5, v4
        v_lshl_add_u32 v4, v6, 4, v4
        s_lshl_b32 s{sT2}, s{sF}, 7
        s_add_u32 s{sT2}, s{sT2}, {part*4*9216}
        """)
        for i in range(4):
            r = 104 + 16 * part + 4 * i
            a(f"buffer_load_dwordx4 v[{r}:{r+3}], v4, s[{S_W1}:{S_W1+3}], s{sT2} offen nt")
            if i < 3:
                a(f"s_add_u32 s{sT2}, s{sT2}, 9216")
    else:
        a(f"""
        v_mul_u32_u24 v4, 9216, v10
        v_lshl_add_u32 v4, v11, 4, v4
        s_mul_i32 s{sT2}, s{sF}, 73728
        s_add_u32 s{sT2}, s{sT2}, {(part-2)*4608}
        """)
        for u in range(4):
            r = 136 + 16 * (part - 2) + 4 * u
            a(f"buffer_load_dwordx4 v[{r}:{r+3}], v4, s[{S_W2}:{S_W2+3}], s{sT2} offen offset:{u*1152} nt")
    a.label(l)


def ffn_b(a):
    a(f"""
    s_cmp_ge_u32 s{sF}, 72
    s_cbranch_scc1 ffn_done
    v_lshrrev_b32 v2, 3, v0
    v_and_b32 v3, 7, v0
    v_lshlrev_b32 v4, 4, v2
    buffer_load_dwordx4 v[88:91], v4, s[{S_X}:{S_X+3}], 0 offen
    buffer_load_dwordx4 v[92:95], v4, s[{S_X}:{S_X+3}], 0 offen offset:1152
    v_lshlrev_b32 v9, 1, v1
    s_lshl_b32 s{sT0}, s{sF}, 7
    buffer_load_ushort v12, v9, s[{S_B1}:{S_B1+3}], s{sT0} offen
    s_barrier
    """)
    ffn_prefetch(a, 2)
    ffn_prefetch(a, 3)
    for i in range(16):
        a(f"v_mov_b32 v{16+i}, 0")
    a("s_waitcnt vmcnt(8)")
    dot_rows(a, 104, 8, [88, 92], [16, 24], 14)
    a(f"""
    s_nop 3
    v_lshlrev_b32 v4, 9, v2
    v_lshl_add_u32 v4, v3, 5, v4
    ds_write_b128 v4, v[16:19] offset:{LA_R1}
    ds_write_b128 v4, v[20:23] offset:{LA_R1+16}
    ds_write_b128 v4, v[24:27] offset:{LA_R1+256}
    ds_write_b128 v4, v[28:31] offset:{LA_R1+272}
    s_waitcnt lgkmcnt(0)
    s_barrier
    """)
    skip_if_wave_ge(a, 2, "ffn_skip_red")
    a("v_lshlrev_b32 v4, 2, v0")
    regs = list(range(16, 88))
    for g in range(72):
        a(f"ds_read_b32 v{regs[g]}, v4 offset:{LA_R1+g*512}")
    a("s_waitcnt lgkmcnt(0)")
    sum_tree(a, regs)
    round_bf16(a, 16)
    a("""
    v_lshlrev_b32 v12, 16, v12
    v_add_f32 v16, v16, v12
    """)
    round_bf16(a, 16)
    a(f"""
    v_max_f32 v16, 0, v16
    v_mul_f32 v16, v16, v16
    v_cvt_pk_bf16_f32 v16, v16, v16
    v_lshlrev_b32 v4, 1, v0
    ds_write_b16 v4, v16 offset:{LA_SM}
    s_waitcnt lgkmcnt(0)
    """)
    a.label("ffn_skip_red")
    a(f"""
    s_barrier
    v_lshlrev_b32 v4, 4, v10
    ds_read_b128 v[88:91], v4 offset:{LA_SM}
    ds_read_b128 v[92:95], v4 offset:{LA_SM+128}
    """)
    for i in range(16):
        a(f"v_mov_b32 v{16+i}, 0")
    a("s_waitcnt vmcnt(0) lgkmcnt(0)")
    dot_rows(a, 136, 8, [88, 92], [16, 24], 14)
    a(f"""
    s_nop 3
    v_mul_u32_u24 v4, 4608, v10
    v_lshl_add_u32 v4, v11, 5, v4
    ds_write_b128 v4, v[16:19] offset:{LA_R1}
    ds_write_b128 v4, v[20:23] offset:{LA_R1+16}
    ds_write_b128 v4, v[24:27] offset:{LA_R1+2304}
    ds_write_b128 v4, v[28:31] offset:{LA_R1+2320}
    s_waitcnt lgkmcnt(0)
    s_barrier
    v_lshlrev_b32 v4, 4, v0
    v_cmp_gt_u32 vcc, 288, v0
    s_and_saveexec_b64 s[{sEX}:{sEX+1}], vcc
    s_cbranch_execz ffn_st_skip
    """)
    for r in range(8):
        a(f"ds_read_b128 v[{16+4*r}:{19+4*r}], v4 offset:{LA_R1+r*4608}")
    a("s_waitcnt lgkmcnt(0)")
    for k in range(4):
        sum_tree(a, [16 + 4 * r + k for r in range(8)])
    a(f"""
    s_mul_i32 s{sT0}, s{sF}, 4608
    s_add_u32 s{sT0}, s{sT0}, {WS_FFNP}
    buffer_store_dwordx4 v[16:19], v4, s[{S_WS}:{S_WS+3}], s{sT0} offen sc1
    """)
    a.label("ffn_st_skip")
    a(f"""
    s_mov_b64 exec, s[{sEX}:{sEX+1}]
    s_waitcnt vmcnt(0)
    s_barrier
    """)
    a.label("ffn_done")
    signal(a, 4)


def role_b(a):
    R = "B"
    a(f"""
    s_sub_u32 s{sT3}, s2, 128
    s_lshr_b32 s{sB}, s{sT3}, 6
    s_and_b32 s{sSPLIT}, s{sT3}, 63
    s_mov_b32 s{sIDX}, s{sT3}
    v_lshlrev_b32 v8, 4, v1
    v_mov_b32 v12, -1
    v_mov_b32 v13, -1
    v_mov_b32 v14, -1
    v_mov_b32 v15, -1
    s_cmp_lg_u32 s{sWAVE}, 8
    s_cbranch_scc1 b_dma
    v_lshlrev_b32 v28, 9, v1
    v_and_b32 v28, 0x3fff, v28
    s_lshl_b32 s{sT0}, s{sB}, 14
    s_lshl_b32 s{sT1}, s{sSPLIT}, 3
    s_add_u32 s{sT0}, s{sT0}, s{sT1}
    s_add_u32 s{sT0}, s{sT0}, {WS_ML}
    v_mov_b32 v14, 0
    """)
    nonce_wait(a, False)
    if BDELAY == "none":
        a("s_branch b_nodma")
        a.label("b_dma")
    else:
        a.label("b_dma")
        if BDELAY == "flag":
            poll(a, 3)
        else:
            a("s_barrier")
        skip_if_wave_ge(a, 8, "b_nodma")
    a(f"""
    s_lshl_b32 s{sT0}, s{sB}, 5
    s_lshl_b32 s{sT1}, s{sWAVE}, 2
    s_add_u32 s{sT0}, s{sT0}, s{sT1}
    s_lshl_b32 s{sT0}, s{sT0}, 6
    s_add_u32 s{sT0}, s{sT0}, s{sSPLIT}
    s_lshl_b32 s{sT0}, s{sT0}, 10
    s_add_u32 s{sT0}, s{sT0}, {WS_OP}
    """)
    a(f"""
    s_lshl_b32 s{sT0}, s{sT3}, 17
    s_lshl_b32 s{sT1}, s{sWAVE}, 14
    s_add_u32 s{sT0}, s{sT0}, s{sT1}
    """)
    for r in range(16):
        a(f"v_xor_b32 v{16+r}, {r*16}, v8")
    for r in range(16):
        a(f"s_mov_b32 m0, s{sT1}")
        a(f"s_add_u32 s{sT1}, s{sT1}, 1024")
        a(f"buffer_load_dwordx4 v{16+r}, s[{S_CKV}:{S_CKV+3}], s{sT0} offen nt lds")
        a(f"s_add_u32 s{sT0}, s{sT0}, 1024")
    a(f"""
    v_and_b32 v2, 15, v1
    v_lshrrev_b32 v7, 4, v1
    s_lshl_b32 s{sT1}, s{sWAVE}, 4
    v_add_u32 v3, s{sT1}, v2
    v_lshlrev_b32 v3, 10, v3
    """)
    for k4 in range(4):
        a(f"v_add_u32 v{12+k4}, {k4*4}, v7")
        a(f"v_xor_b32 v{12+k4}, v{12+k4}, v2")
        a(f"v_lshl_add_u32 v{12+k4}, v{12+k4}, 4, v3")
    a("s_waitcnt vmcnt(0)")
    for ks in range(16):
        a(f"ds_read_b128 v[{16+4*ks}:{19+4*ks}], v{12+(ks&3)} offset:{(ks>>2)*256}")
    a("s_waitcnt lgkmcnt(0)")
    a.label("b_nodma")
    stamp(a, R, "dma")
    poll(a, 0)
    stamp(a, R, "e1")
    a(f"""
    v_lshlrev_b32 v4, 4, v0
    s_lshl_b32 s{sT0}, s{sB}, 15
    """)
    skip_if_wave_ge(a, 8, "b_noqa")
    a(f"s_mov_b32 s{sT1}, s{sT0}")
    for u in range(4):
        a(f"buffer_load_dwordx4 v[{80+4*u}:{83+4*u}], v4, s[{S_WS}:{S_WS+3}], s{sT1} offen sc1")
        a(f"s_add_u32 s{sT1}, s{sT1}, 8192")
    a(f"""
    v_lshrrev_b32 v4, 2, v1
    v_lshlrev_b32 v4, 11, v4
    v_and_b32 v5, 3, v1
    v_lshl_add_u32 v4, v5, 8, v4
    v_add_u32 v4, {LB_R}, v4
    v_xor_b32 v5, s{sWAVE}, v2
    v_xor_b32 v6, 8, v5
    v_lshl_add_u32 v5, v5, 4, v4
    v_lshl_add_u32 v6, v6, 4, v4
    s_waitcnt vmcnt(0)
    ds_write_b128 v5, v[80:83]
    ds_write_b128 v6, v[84:87]
    ds_write_b128 v5, v[88:91] offset:1024
    ds_write_b128 v6, v[92:95] offset:1024
    s_waitcnt lgkmcnt(0)
    """)
    a.label("b_noqa")
    a("s_barrier")
    ffn_prefetch(a, 0)
    stamp(a, R, "qa")
    skip_if_wave_ge(a, 8, "b_qk_skip")
    a(f"v_lshlrev_b32 v9, 8, v7")
    a(f"v_add_u32 v9, {LB_R}, v9")
    for k4 in range(4):
        a(f"v_add_u32 v{12+k4}, {k4*4}, v7")
        a(f"v_xor_b32 v{12+k4}, v{12+k4}, v2")
        a(f"v_lshl_add_u32 v{12+k4}, v{12+k4}, 4, v9")
    for i in range(8):
        a(f"v_mov_b32 v{96+i}, 0")
    def qk_reads(ks):
        base = 80 + 8 * (ks & 1)
        a(f"ds_read_b128 v[{base}:{base+3}], v{12+(ks&3)} offset:{ks*2048}")
        a(f"ds_read_b128 v[{base+4}:{base+7}], v{12+(ks&3)} offset:{ks*2048+1024}")
    qk_reads(0)
    qk_reads(1)
    for ks in range(16):
        a(f"s_waitcnt lgkmcnt({2 if ks < 15 else 0})")
        base = 80 + 8 * (ks & 1)
        A_ = 16 + 4 * ks
        a(f"v_mfma_f32_16x16x32_bf16 v[96:99], v[{A_}:{A_+3}], v[{base}:{base+3}], v[96:99]")
        a(f"v_mfma_f32_16x16x32_bf16 v[100:103], v[{A_}:{A_+3}], v[{base+4}:{base+7}], v[100:103]")
        if ks + 2 < 16:
            a("s_nop 1")
            qk_reads(ks + 2)
    a(f"""
    v_lshrrev_b32 v84, 2, v2
    v_lshlrev_b32 v84, 2, v84
    v_lshrrev_b32 v85, 5, v1
    v_lshl_add_u32 v84, v85, 1, v84
    v_and_b32 v85, 1, v7
    v_lshlrev_b32 v85, 1, v85
    v_bfe_u32 v86, v1, 1, 1
    v_add_u32 v85, v85, v86
    s_and_b32 s{sT1}, s{sWAVE}, 1
    s_lshl_b32 s{sT1}, s{sT1}, 3
    v_add_u32 v85, s{sT1}, v85
    v_and_b32 v86, 1, v1
    v_lshlrev_b32 v86, 3, v86
    s_lshr_b32 s{sT1}, s{sWAVE}, 1
    s_lshl_b32 s{sT1}, s{sT1}, 8
    v_add_u32 v86, s{sT1}, v86
    """)
    for nt in range(2):
        for t in range(2):
            d = 12 + 2 * nt + t
            a(f"v_add_u32 v87, {t}, v84")
            a(f"v_add_u32 v88, {4*nt}, v85")
            a(f"v_xor_b32 v88, v88, v87")
            a(f"v_lshl_add_u32 v{d}, v87, 10, v86")
            a(f"v_lshl_add_u32 v{d}, v88, 4, v{d}")
    a(f"s_mov_b32 s{sT1}, {f32bits(SCALE_LOG2)}")
    for i in range(8):
        a(f"v_mul_f32 v{96+i}, s{sT1}, v{96+i}")
    a("""
    v_max3_f32 v80, v96, v97, v98
    v_max_f32 v80, v80, v99
    v_max3_f32 v81, v100, v101, v102
    v_max_f32 v81, v81, v103
    """)
    for ks in range(8):
        if ks == 4:
            for d in range(12, 16):
                a(f"v_add_u32 v{d}, 0x10000, v{d}")
        for nt in range(2):
            for t in range(2):
                r = 16 + 8 * ks + 4 * nt + 2 * t
                a(f"ds_read_b64_tr_b16 v[{r}:{r+1}], v{12+2*nt+t} offset:{(ks&3)*16384}")
    xrow_reduce(a, "v_max_f32", 80, 82)
    xrow_reduce(a, "v_max_f32", 81, 82)
    a.label("b_qk_skip")
    ffn_prefetch(a, 1)
    a("s_barrier")
    stamp(a, R, "qk")
    LB_P = LB_R
    skip_if_wave_ge(a, 8, "b_mx_skip")
    a(f"""
    v_lshlrev_b32 v12, 5, v2
    v_add_u32 v12, {LB_R}, v12
    s_lshl_b32 s{sT1}, s{sWAVE}, 2
    v_add_u32 v13, s{sT1}, v12
    ds_write_b32 v13, v80 offset:8192
    ds_write_b32 v13, v81 offset:{8192+512}
    s_waitcnt lgkmcnt(0)
    """)
    a.label("b_mx_skip")
    a("s_barrier")
    skip_if_wave_ge(a, 8, "b_sm_skip")
    a(f"""
    ds_read_b128 v[80:83], v12 offset:8192
    ds_read_b128 v[84:87], v12 offset:{8192+16}
    ds_read_b128 v[88:91], v12 offset:{8192+512}
    ds_read_b128 v[92:95], v12 offset:{8192+528}
    s_waitcnt lgkmcnt(0)
    v_max3_f32 v80, v80, v81, v82
    v_max3_f32 v80, v80, v83, v84
    v_max3_f32 v80, v80, v85, v86
    v_max_f32 v80, v80, v87
    v_max3_f32 v81, v88, v89, v90
    v_max3_f32 v81, v81, v91, v92
    v_max3_f32 v81, v81, v93, v94
    v_max_f32 v81, v81, v95
    """)
    for i in range(4):
        a(f"v_sub_f32 v{96+i}, v{96+i}, v80")
        a(f"v_sub_f32 v{100+i}, v{100+i}, v81")
    for i in range(8):
        a(f"v_exp_f32 v{96+i}, v{96+i}")
    a(f"""
    s_nop 0
    v_add_f32 v84, v96, v97
    v_add_f32 v85, v98, v99
    v_add_f32 v84, v84, v85
    v_add_f32 v85, v100, v101
    v_add_f32 v86, v102, v103
    v_add_f32 v85, v85, v86
    v_cvt_pk_bf16_f32 v86, v96, v97
    v_cvt_pk_bf16_f32 v87, v98, v99
    v_cvt_pk_bf16_f32 v88, v100, v101
    v_cvt_pk_bf16_f32 v89, v102, v103
    s_lshl_b32 s{sT1}, s{sWAVE}, 10
    s_add_u32 s{sT1}, s{sT1}, {LB_P}
    v_lshlrev_b32 v90, 4, v2
    v_lshl_add_u32 v90, v7, 1, v90
    v_add_u32 v90, s{sT1}, v90
    ds_write_b16 v90, v86
    ds_write_b16_d16_hi v90, v86 offset:8
    ds_write_b16 v90, v87 offset:512
    ds_write_b16_d16_hi v90, v87 offset:520
    ds_write_b16 v90, v88 offset:256
    ds_write_b16_d16_hi v90, v88 offset:264
    ds_write_b16 v90, v89 offset:768
    ds_write_b16_d16_hi v90, v89 offset:776
    """)
    xrow_reduce(a, "v_add_f32", 84, 91)
    xrow_reduce(a, "v_add_f32", 85, 91)
    a(f"""
    ds_write_b32 v13, v84 offset:9216
    ds_write_b32 v13, v85 offset:{9216+512}
    """)
    for i in range(32):
        a(f"v_mov_b32 v{136+i}, 0")
    a(f"""
    v_add_u32 v9, {LB_P}, v8
    s_waitcnt lgkmcnt(0)
    """)
    a.label("b_sm_skip")
    a("s_barrier")
    stamp(a, R, "sm")
    a(f"s_cmp_lt_u32 s{sWAVE}, 8")
    a("s_cbranch_scc1 b_pv_go")
    a(f"""
    v_lshlrev_b32 v28, 5, v1
    v_add_u32 v28, {LB_R}, v28
    v_cmp_gt_u32 vcc, 32, v1
    s_and_saveexec_b64 s[{sEX}:{sEX+1}], vcc
    ds_read_b128 v[12:15], v28 offset:8192
    ds_read_b128 v[16:19], v28 offset:{8192+16}
    ds_read_b128 v[20:23], v28 offset:9216
    ds_read_b128 v[24:27], v28 offset:{9216+16}
    s_waitcnt lgkmcnt(0)
    v_max3_f32 v12, v12, v13, v14
    v_max3_f32 v12, v12, v15, v16
    v_max3_f32 v12, v12, v17, v18
    v_max_f32 v12, v12, v19
    """)
    sum_tree(a, range(20, 28))
    a(f"""
    v_mov_b32 v13, v20
    v_lshlrev_b32 v28, 9, v1
    s_lshl_b32 s{sT0}, s{sB}, 14
    s_lshl_b32 s{sT1}, s{sSPLIT}, 3
    s_add_u32 s{sT0}, s{sT0}, s{sT1}
    s_add_u32 s{sT0}, s{sT0}, {WS_ML}
    buffer_store_dwordx2 v[12:13], v28, s[{S_WS}:{S_WS+3}], s{sT0} offen sc1
    s_mov_b64 exec, s[{sEX}:{sEX+1}]
    """)
    a("s_branch b_pv_skip")
    a.label("b_pv_go")
    def preads(ks):
        r = 80 + 4 * (ks % 6)
        a(f"ds_read_b128 v[{r}:{r+3}], v9 offset:{ks*1024}")
    for ks in range(6):
        preads(ks)
    for ks in range(8):
        outstanding_after = min(7, ks + 5) - ks if ks < 2 else 7 - ks
        a(f"s_waitcnt lgkmcnt({min(5, 7-ks)})")
        r = 80 + 4 * (ks % 6)
        for nt in range(2):
            c = 16 + 8 * ks + 4 * nt
            a(f"v_mfma_f32_32x32x16_bf16 v[{136+16*nt}:{151+16*nt}], v[{c}:{c+3}], v[{r}:{r+3}], v[{136+16*nt}:{151+16*nt}]")
        if ks + 6 < 8:
            a("s_nop 3")
            preads(ks + 6)
    a("s_nop 7")
    a("s_nop 7")
    for nt in range(2):
        b0_ = 136 + 16 * nt
        for qp in range(2):
            d = 16 + 8 * nt + 4 * qp
            a(f"v_cvt_pk_bf16_f32 v{d}, v{b0_+8*qp}, v{b0_+8*qp+1}")
            a(f"v_cvt_pk_bf16_f32 v{d+1}, v{b0_+8*qp+2}, v{b0_+8*qp+3}")
            a(f"v_cvt_pk_bf16_f32 v{d+2}, v{b0_+8*qp+4}, v{b0_+8*qp+5}")
            a(f"v_cvt_pk_bf16_f32 v{d+3}, v{b0_+8*qp+6}, v{b0_+8*qp+7}")
    a("s_nop 1")
    for nt in range(2):
        for qp in range(2):
            d = 16 + 8 * nt + 4 * qp
            a(f"v_permlane32_swap_b32 v{d}, v{d+2}")
            a(f"v_permlane32_swap_b32 v{d+1}, v{d+3}")
    a.label("b_pv_skip")
    a("s_barrier")
    stamp(a, R, "pv")
    skip_if_wave_ge(a, 8, "b_ow_skip")
    a(f"""
    v_and_b32 v32, 31, v1
    v_mul_u32_u24 v32, {OROW}, v32
    v_lshrrev_b32 v33, 5, v1
    v_lshl_add_u32 v32, v33, 4, v32
    s_lshl_b32 s{sT1}, s{sWAVE}, 7
    v_add_u32 v32, s{sT1}, v32
    ds_write_b128 v32, v[16:19]
    ds_write_b128 v32, v[20:23] offset:32
    ds_write_b128 v32, v[24:27] offset:64
    ds_write_b128 v32, v[28:31] offset:96
    s_waitcnt lgkmcnt(0)
    """)
    a.label("b_ow_skip")
    a("s_barrier")
    stamp(a, R, "ow")
    skip_if_wave_ge(a, 8, "b_ml")
    a(f"""
    s_mul_i32 s{sT1}, s{sWAVE}, {4*OROW}
    v_add_u32 v29, s{sT1}, v8
    ds_read_b128 v[32:35], v29
    ds_read_b128 v[36:39], v29 offset:{OROW}
    ds_read_b128 v[40:43], v29 offset:{2*OROW}
    ds_read_b128 v[44:47], v29 offset:{3*OROW}
    s_lshl_b32 s{sT0}, s{sB}, 5
    s_lshl_b32 s{sT1}, s{sWAVE}, 2
    s_add_u32 s{sT0}, s{sT0}, s{sT1}
    s_lshl_b32 s{sT0}, s{sT0}, 6
    s_add_u32 s{sT0}, s{sT0}, s{sSPLIT}
    s_lshl_b32 s{sT0}, s{sT0}, 10
    s_add_u32 s{sT0}, s{sT0}, {WS_OP}
    """)
    for u in range(4):
        a(f"s_waitcnt lgkmcnt({3-u})")
        a(f"buffer_store_dwordx4 v[{32+4*u}:{35+4*u}], v8, s[{S_WS}:{S_WS+3}], s{sT0} offen sc1")
        a(f"s_add_u32 s{sT0}, s{sT0}, {64*1024}")
    a("s_branch b_st_done")
    a.label("b_ml")
    a.label("b_st_done")
    stamp(a, R, "sti")
    a("s_waitcnt vmcnt(0)")
    stamp(a, R, "drn")
    a("s_barrier")
    stamp(a, R, "pre2")
    signal(a, 1)
    a("s_barrier")
    stamp(a, R, "sig2")
    ffn_b(a)
    stamp(a, R, "ffn")
    if STAMP:
        a(f"s_cmp_ge_u32 s{sT3}, 36")
        a("s_cbranch_scc0 b_p4")
        stamp_dump(a)
        a("s_endpgm")
        a.label("b_p4")
    else:
        a(f"""
        s_cmp_ge_u32 s{sT3}, 36
        s_cbranch_scc1 k_end
        """)
    LP_SM = 65536 - 256
    a(f"""
    s_cmp_ge_u32 s{sT3}, 18
    s_cselect_b32 s{sB}, 1, 0
    s_mul_i32 s{sJ}, s{sB}, 18
    s_sub_u32 s{sJ}, s{sT3}, s{sJ}
    s_cmp_lg_u32 s{sWAVE}, 4
    s_cbranch_scc1 p4_nogate
    v_mov_b32 v60, 0
    v_lshlrev_b32 v4, 5, v1
    s_mul_i32 s{sT0}, s{sB}, 1152
    v_cmp_gt_u32 vcc, 36, v1
    s_and_saveexec_b64 s[{sEX}:{sEX+1}], vcc
    buffer_load_dwordx4 v[64:67], v4, s[{S_X}:{S_X+3}], s{sT0} offen
    buffer_load_dwordx4 v[68:71], v4, s[{S_X}:{S_X+3}], s{sT0} offen offset:16
    buffer_load_dwordx4 v[72:75], v4, s[{S_GATE}:{S_GATE+3}], 0 offen
    buffer_load_dwordx4 v[76:79], v4, s[{S_GATE}:{S_GATE+3}], 0 offen offset:16
    s_waitcnt vmcnt(0)
    """)
    for q in range(8):
        a(f"v_lshlrev_b32 v61, 16, v{64+q}")
        a(f"v_lshlrev_b32 v62, 16, v{72+q}")
        a(f"v_mul_f32 v61, v61, v62")
        round_bf16(a, 61)
        a(f"v_add_f32 v60, v60, v61")
        a(f"v_and_b32 v61, 0xffff0000, v{64+q}")
        a(f"v_and_b32 v62, 0xffff0000, v{72+q}")
        a(f"v_mul_f32 v61, v61, v62")
        round_bf16(a, 61)
        a(f"v_add_f32 v60, v60, v61")
    a(f"s_mov_b64 exec, s[{sEX}:{sEX+1}]")
    wave_reduce(a, "v_add_f32", 60, 61)
    round_bf16(a, 60)
    a(f"""
    v_mul_f32 v60, {f32bits(-1.4426950408889634)}, v60
    v_exp_f32 v60, v60
    s_nop 0
    v_add_f32 v60, 1.0, v60
    v_rcp_f32 v60, v60
    s_nop 0
    """)
    round_bf16(a, 60)
    a(f"""
    v_mov_b32 v4, 0
    ds_write_b32 v4, v60 offset:{LP_SM}
    s_waitcnt lgkmcnt(0)
    """)
    a.label("p4_nogate")
    a(f"""
    s_cmp_lg_u32 s{sWAVE}, 8
    s_cbranch_scc1 p4_nn
    v_mov_b32 v4, 0
    v_mov_b32 v5, s{sNONCE}
    ds_write_b32 v4, v5 offset:{LP_SM+16}
    s_waitcnt lgkmcnt(0)
    p4_nn:
    v_and_b32 v62, 31, v1
    v_lshlrev_b32 v62, 1, v62
    s_lshl_b32 s{sT1}, s{sJ}, 6
    buffer_load_ushort v63, v62, s[{S_B2}:{S_B2+3}], s{sT1} offen
    """)
    poll(a, 4)
    skip_if_wave_ge(a, 8, "p4_ld_skip")
    a(f"""
    v_mov_b32 v4, 0
    ds_read_b32 v5, v4 offset:{LP_SM+16}
    v_lshrrev_b32 v2, 3, v0
    v_and_b32 v3, 7, v0
    v_mul_u32_u24 v4, 4608, v2
    v_lshl_add_u32 v4, v3, 4, v4
    s_mul_i32 s{sT0}, s{sB}, 2304
    s_lshl_b32 s{sT1}, s{sJ}, 7
    s_add_u32 s{sT0}, s{sT0}, s{sT1}
    """)
    for u in range(2):
        a(f"buffer_load_dwordx4 v[{48+4*u}:{51+4*u}], v4, s[{S_FP}:{S_FP+3}], s{sT0} offen sc1")
        a(f"s_add_u32 s{sT0}, s{sT0}, {64*4608}")
    a(f"""
    v_lshrrev_b32 v6, 4, v0
    v_and_b32 v7, 15, v0
    v_mul_u32_u24 v9, 9216, v6
    v_lshl_add_u32 v9, v7, 4, v9
    s_mul_i32 s{sT0}, s{sB}, 4608
    s_lshl_b32 s{sT1}, s{sJ}, 8
    s_add_u32 s{sT0}, s{sT0}, s{sT1}
    s_add_u32 s{sT0}, s{sT0}, {WS_AP}
    s_mov_b32 s{sCNT}, 0
    s_waitcnt lgkmcnt(0)
    """)
    a.label("e3v_retry")
    a(f"s_mov_b32 s{sT2}, s{sT0}")
    for u in range(4):
        a(f"buffer_load_dwordx4 v[{16+4*u}:{19+4*u}], v9, s[{S_WS}:{S_WS+3}], s{sT2} offen sc1")
        a(f"s_add_u32 s{sT2}, s{sT2}, {32*9216}")
    a("s_waitcnt vmcnt(0)")
    for i in range(8):
        a(f"v_xor_b32 v{17+2*i}, v{17+2*i}, v5")
    a("""
    v_or3_b32 v17, v17, v19, v21
    v_or3_b32 v23, v23, v25, v27
    v_or3_b32 v17, v17, v29, v31
    v_or_b32 v17, v17, v23
    v_cmp_ne_u32 vcc, 0, v17
    """)
    retry_tail(a, "e3v")
    stamp(a, R, "e3")
    a(f"""
    v_add_f32 v16, v16, v20
    v_add_f32 v24, v24, v28
    v_add_f32 v16, v16, v24
    v_add_f32 v18, v18, v22
    v_add_f32 v26, v26, v30
    v_add_f32 v17, v18, v26
    v_add_f32 v48, v48, v52
    v_add_f32 v49, v49, v53
    v_add_f32 v50, v50, v54
    v_add_f32 v51, v51, v55
    s_nop 1
    v_add_f32_dpp v48, v48, v48 row_ror:8 row_mask:0xf bank_mask:0xf
    v_add_f32_dpp v49, v49, v49 row_ror:8 row_mask:0xf bank_mask:0xf
    v_add_f32_dpp v50, v50, v50 row_ror:8 row_mask:0xf bank_mask:0xf
    v_add_f32_dpp v51, v51, v51 row_ror:8 row_mask:0xf bank_mask:0xf
    """)
    regs = [16, 17, 48, 49, 50, 51]
    tmps = [20, 21, 22, 23, 24, 25]
    for op in ("v_permlane16_swap_b32", "v_permlane32_swap_b32"):
        for r, t in zip(regs, tmps):
            a(f"v_mov_b32 v{t}, v{r}")
        a("s_nop 1")
        for r, t in zip(regs, tmps):
            a(f"{op} v{r}, v{t}")
        a("s_nop 1")
        for r, t in zip(regs, tmps):
            a(f"v_add_f32 v{r}, v{r}, v{t}")
    a(f"""
    s_lshl_b32 s{sT2}, s{sWAVE}, 7
    v_lshlrev_b32 v4, 3, v7
    v_add_u32 v4, s{sT2}, v4
    ds_write_b64 v4, v[16:17] offset:40960
    v_lshlrev_b32 v4, 4, v3
    v_add_u32 v4, s{sT2}, v4
    ds_write_b128 v4, v[48:51] offset:49152
    s_waitcnt lgkmcnt(0)
    """)
    a.label("p4_ld_skip")
    a(f"""
    s_barrier
    s_cmp_lg_u32 s{sWAVE}, 0
    s_cbranch_scc1 p4_end
    v_and_b32 v4, 31, v1
    v_lshlrev_b32 v4, 2, v4
    v_mov_b32 v3, 0
    """)
    for g in range(8):
        a(f"ds_read_b32 v{16+g}, v4 offset:{40960+g*128}")
    for g in range(8):
        a(f"ds_read_b32 v{64+g}, v4 offset:{49152+g*128}")
    a(f"""
    ds_read_b32 v60, v3 offset:{LP_SM}
    v_mov_b32 v7, v62
    s_lshl_b32 s{sT1}, s{sJ}, 6
    s_waitcnt lgkmcnt(0)
    """)
    sum_tree(a, range(16, 24))
    sum_tree(a, range(64, 72))
    round_bf16(a, 16)
    a("v_mov_b32 v17, v64")
    round_bf16(a, 17)
    a("""
    v_lshlrev_b32 v8, 16, v63
    v_add_f32 v17, v17, v8
    """)
    round_bf16(a, 17)
    a("v_mul_f32 v16, v60, v16")
    round_bf16(a, 16)
    a("v_sub_f32 v18, 1.0, v60")
    round_bf16(a, 18)
    a("v_mul_f32 v17, v18, v17")
    round_bf16(a, 17)
    a(f"""
    v_add_f32 v16, v16, v17
    v_cvt_pk_bf16_f32 v16, v16, v16
    s_mul_i32 s{sT0}, s{sB}, 1152
    s_add_u32 s{sT0}, s{sT0}, s{sT1}
    v_cmp_gt_u32 vcc, 32, v1
    s_and_saveexec_b64 s[{sEX}:{sEX+1}], vcc
    buffer_store_short v16, v7, s[{S_OUT}:{S_OUT+3}], s{sT0} offen
    s_mov_b64 exec, s[{sEX}:{sEX+1}]
    """)
    a.label("p4_end")
    stamp(a, R, "end")
    stamp_dump(a)


def gen(a):
    name = NAME + "_kernel"
    a.raw(".text")
    a.raw(f".globl {name}")
    a.raw(".p2align 8")
    a.raw(f".type {name},@function")
    a.label(name)
    a(f"""
    s_cmp_ge_u32 s2, 256
    s_cbranch_scc1 k_end
    s_load_dwordx2 s[{S_X}:{S_X+1}], s[0:1], 0
    s_load_dwordx2 s[{S_CKV}:{S_CKV+1}], s[0:1], 8
    s_load_dwordx2 s[{S_WQ}:{S_WQ+1}], s[0:1], 16
    s_load_dwordx2 s[{S_WUK}:{S_WUK+1}], s[0:1], 24
    s_load_dwordx2 s[{S_WUV}:{S_WUV+1}], s[0:1], 32
    s_load_dwordx2 s[{S_WO}:{S_WO+1}], s[0:1], 40
    s_load_dwordx2 s[{S_W1}:{S_W1+1}], s[0:1], 56
    s_load_dwordx2 s[{S_B1}:{S_B1+1}], s[0:1], 64
    s_load_dwordx2 s[{S_W2}:{S_W2+1}], s[0:1], 72
    s_load_dwordx2 s[{S_B2}:{S_B2+1}], s[0:1], 80
    s_load_dwordx2 s[{S_GATE}:{S_GATE+1}], s[0:1], 88
    s_load_dwordx2 s[{S_OUT}:{S_OUT+1}], s[0:1], 96
    s_load_dwordx2 s[{S_DBG}:{S_DBG+1}], s[0:1], 104
    s_load_dwordx2 s[{S_WS}:{S_WS+1}], s[0:1], 112
    s_load_dwordx2 s[{S_FP}:{S_FP+1}], s[0:1], 112
    """)
    srd(a, S_X, 2304); srd(a, S_CKV, 16777216); srd(a, S_WQ, 4718592); srd(a, S_WUK, 4194304)
    srd(a, S_WUV, 4194304); srd(a, S_WO, 4718592); srd(a, S_W1, 5308416); srd(a, S_B1, 9216)
    srd(a, S_W2, 5308416); srd(a, S_B2, 1152); srd(a, S_GATE, 1152); srd(a, S_OUT, 2304)
    srd(a, S_DBG, 256); srd(a, S_WS, 268435456); srd(a, S_FP, 72 * 4608)
    a(f"""
    s_mov_b32 s{sLO}, 0x05040100
    s_mov_b32 s{sHI}, 0x07060302
    v_readfirstlane_b32 s{sWAVE}, v0
    s_lshr_b32 s{sWAVE}, s{sWAVE}, 6
    v_and_b32 v1, 63, v0
    s_waitcnt lgkmcnt(0)
    s_add_u32 s{S_FP}, s{S_FP}, {WS_FFNP}
    s_addc_u32 s{S_FP+1}, s{S_FP+1}, 0
    """)
    stamp(a, "A", "start");
    if STAMP:
        STAMPS["B"].append("start")
    a(f"""
    s_cmp_ge_u32 s2, 128
    s_cbranch_scc1 role_b
    s_lshl_b32 s{sT0}, s{sWAVE}, 8
    s_add_u32 s{sT0}, s{sT0}, s2
    s_cmp_ge_u32 s{sT0}, 8
    s_cbranch_scc1 a_nonw
    s_memrealtime s[{sTS}:{sTS+1}]
    v_mov_b32 v14, 0
    v_mov_b32 v13, 0
    v_cmp_eq_u32 vcc, 0, v1
    s_waitcnt lgkmcnt(0)
    s_or_b32 s{sTS}, s{sTS}, 1
    v_mov_b32 v12, s{sTS}
    s_and_saveexec_b64 s[{sEX}:{sEX+1}], vcc
    buffer_atomic_cmpswap v[12:13], v14, s[{S_DBG}:{S_DBG+3}], 0 offen
    s_mov_b64 exec, s[{sEX}:{sEX+1}]
    a_nonw:
    """)
    role_a(a)
    a.label("role_b")
    role_b(a)
    a.label("k_end")
    a("s_endpgm")
    a.raw('.section .rodata,"a"')
    a.raw(".p2align 6")
    a.raw(f".amdhsa_kernel {name}")
    a.raw("  .amdhsa_next_free_vgpr 168")
    a.raw("  .amdhsa_next_free_sgpr 102")
    a.raw("  .amdhsa_accum_offset 168")
    a.raw("  .amdhsa_group_segment_fixed_size 0")
    a.raw("  .amdhsa_kernarg_size 120")
    a.raw("  .amdhsa_user_sgpr_count 2")
    a.raw("  .amdhsa_user_sgpr_kernarg_segment_ptr 1")
    a.raw("  .amdhsa_system_sgpr_workgroup_id_x 1")
    a.raw(".end_amdhsa_kernel")


def main():
    out = sys.argv[1] if len(sys.argv) > 1 else f"cdna_kernels/{NAME}.s"
    hdr = open(f"cdna_kernels/{NAME}.s.ref").read().split("\n")
    hdr = [l for l in hdr if l.startswith(";") and "@launch" not in l]
    a = A()
    for l in hdr:
        a.raw(l)
    a.raw(f"; @launch grid=(256,1,1) block=(576,1,1) lds={LDS_TOTAL}")
    a.raw('.amdgcn_target "amdgcn-amd-amdhsa--gfx950"')
    gen(a)
    open(out, "w").write(a.text())
    if STAMP:
        print(STAMPS)


main()
```

```python
import sys, os, struct

NAME = "gated_mix__compressed_kv_cla__dense_activation_squared_relu__decode"
STAMP = int(os.environ.get("STAMP", "0"))
WQPOL = os.environ.get("WQPOL", "nt")
BDELAY = os.environ.get("BDELAY", "nonce")
WOPOL = os.environ.get("WOPOL", "nt")

WS_QA = 0
WS_ML = 0x80000
WS_FFNP = 0x100000
WS_AP = 0x200000
WS_TS = 0x400000
WS_QP = 0xA0000
WS_FL = 0xF0000
WS_OP = 0x1000000

SCALE_LOG2 = (128 ** -0.5) * 1.4426950408889634
SPIN_MAX = 200000


def f32bits(x):
    return struct.unpack("<I", struct.pack("<f", x))[0]


class A:
    def __init__(self):
        self.l = []
        self.n = 0
    def __call__(self, s):
        for line in s.strip("\n").split("\n"):
            if line.strip():
                self.l.append("    " + line.strip())
    def label(self, s):
        self.l.append(s + ":")
    def raw(self, s):
        self.l.append(s)
    def uniq(self, p):
        self.n += 1
        return f"{p}_{self.n}"
    def text(self):
        return "\n".join(self.l) + "\n"


S_X, S_CKV, S_WQ, S_WUK, S_WUV, S_WO, S_W1, S_B1, S_W2, S_B2, S_GATE, S_OUT, S_DBG, S_WS, S_FP = \
    4, 8, 12, 16, 20, 24, 28, 32, 36, 40, 44, 48, 52, 56, 60
sWAVE, sH, sJ, sB, sSPLIT, sLO, sHI, sT0, sT1, sT2, sT3, sF, sCNT = 64, 65, 66, 67, 68, 69, 70, 72, 73, 74, 75, 76, 77
sEX = 78
sTS = 80
sNONCE = 71
sIDX = 3
sQA = 68

LDS_TOTAL = 163840
LA_SM = 0
LA_R1 = 2048
LA_R2 = 40960
LB_C = 0
LB_R = 131072
OROW = 1040


def srd(a, s, size):
    a(f"s_mov_b32 s{s+2}, {size}")
    a(f"s_mov_b32 s{s+3}, 0x00020000")


def dot_rows(a, W, nrows, X, acc, tmp, waits=None):
    for p in range(nrows // 2):
        if waits is not None and waits[p] is not None:
            a(f"s_waitcnt vmcnt({waits[p]})")
        for q in range(4):
            r0 = W + 4 * (2 * p) + q
            r1 = W + 4 * (2 * p + 1) + q
            a(f"v_perm_b32 v{tmp}, v{r1}, v{r0}, s{sLO}")
            a(f"v_perm_b32 v{tmp+1}, v{r1}, v{r0}, s{sHI}")
            for b in range(len(X)):
                a(f"v_dot2c_f32_bf16 v{acc[b]+2*q}, v{tmp}, v{X[b]+p}")
                a(f"v_dot2c_f32_bf16 v{acc[b]+2*q+1}, v{tmp+1}, v{X[b]+p}")


def sum_tree(a, regs):
    regs = list(regs)
    while len(regs) > 1:
        nxt = []
        for i in range(0, len(regs) - 1, 2):
            a(f"v_add_f32 v{regs[i]}, v{regs[i]}, v{regs[i+1]}")
            nxt.append(regs[i])
        if len(regs) % 2:
            nxt.append(regs[-1])
        regs = nxt


def round_bf16(a, v):
    a(f"v_cvt_pk_bf16_f32 v{v}, v{v}, v{v}")
    a(f"v_lshlrev_b32 v{v}, 16, v{v}")


def xrow_reduce(a, op, v, t):
    a(f"v_mov_b32 v{t}, v{v}")
    a("s_nop 1")
    a(f"v_permlane16_swap_b32 v{v}, v{t}")
    a("s_nop 1")
    a(f"{op} v{v}, v{v}, v{t}")
    a(f"v_mov_b32 v{t}, v{v}")
    a("s_nop 1")
    a(f"v_permlane32_swap_b32 v{v}, v{t}")
    a("s_nop 1")
    a(f"{op} v{v}, v{v}, v{t}")


def wave_reduce(a, op, v, t):
    for m in ("quad_perm:[1,0,3,2]", "quad_perm:[2,3,0,1]", "row_half_mirror", "row_mirror"):
        a("s_nop 1")
        a(f"{op}_dpp v{v}, v{v}, v{v} {m} row_mask:0xf bank_mask:0xf")
    xrow_reduce(a, op, v, t)


def skip_if_wave_ge(a, n, label):
    a(f"s_cmp_ge_u32 s{sWAVE}, {n}")
    a(f"s_cbranch_scc1 {label}")


STAMPS = {"A": [], "B": []}
def stamp(a, role, name):
    if not STAMP:
        return
    STAMPS[role].append(name)
    idx = len(STAMPS[role]) - 1
    a(f"s_memrealtime s[{sTS}:{sTS+1}]")
    a(f"s_waitcnt lgkmcnt(0)")
    a(f"s_mov_b32 s{82+idx}, s{sTS}")


DBGDUMP = int(os.environ.get("DBGDUMP", "0"))
def stamp_dump(a):
    if not STAMP:
        return
    if DBGDUMP:
        l = a.uniq("dd")
        a(f"s_cmp_lg_u32 s{sWAVE}, 0")
        a(f"s_cbranch_scc1 {l}")
        a(f"v_mov_b32 v4, 0")
        a(f"s_cmp_lg_u32 s2, 5")
        a(f"s_cbranch_scc1 {l}_b")
        for k, i in enumerate([2, 4, 6, 7, 8, 9, 12]):
            a(f"s_sub_u32 s{sT3}, s{82+i}, s82")
            a(f"v_mov_b32 v2, s{sT3}")
            a(f"buffer_store_dword v2, v4, s[{S_DBG}:{S_DBG+3}], 0 offen offset:{4+4*k}")
        a.label(f"{l}_b")
        a(f"s_cmp_lg_u32 s2, 133")
        a(f"s_cbranch_scc1 {l}")
        for k, i in enumerate([1, 2, 3, 4, 6, 8, 10, 11]):
            a(f"s_sub_u32 s{sT3}, s{82+i}, s82")
            a(f"v_mov_b32 v2, s{sT3}")
            a(f"buffer_store_dword v2, v4, s[{S_DBG}:{S_DBG+3}], 0 offen offset:{32+4*k}")
        a.label(l)
        return
    a(f"v_mov_b32 v4, 0")
    a(f"v_mov_b32 v3, 0")
    a(f"s_mul_i32 s{sT3}, s2, 9")
    a(f"s_add_u32 s{sT3}, s{sT3}, s{sWAVE}")
    a(f"s_lshl_b32 s{sT3}, s{sT3}, 8")
    a(f"s_add_u32 s{sT3}, s{sT3}, {WS_TS}")
    for i in range(19):
        a(f"v_mov_b32 v2, s{82+i}")
        a(f"buffer_store_dwordx2 v[2:3], v4, s[{S_WS}:{S_WS+3}], s{sT3} offen offset:{i*8}")
        a("s_nop 1")


def signal(a, e):
    l = a.uniq("sig")
    a(f"s_cmp_lg_u32 s{sWAVE}, 8")
    a(f"s_cbranch_scc1 {l}")
    a(f"s_lshl_b32 s{sT0}, s{sIDX}, 2")
    a(f"s_add_u32 s{sT0}, s{sT0}, {WS_FL + e*8192}")
    a(f"v_mov_b32 v2, s{sNONCE}")
    a(f"v_lshlrev_b32 v3, 10, v1")
    a(f"v_cmp_gt_u32 vcc, 8, v1")
    a(f"s_and_saveexec_b64 s[{sEX}:{sEX+1}], vcc")
    a(f"buffer_store_dword v2, v3, s[{S_WS}:{S_WS+3}], s{sT0} offen sc1")
    a(f"s_mov_b64 exec, s[{sEX}:{sEX+1}]")
    a.label(l)


def poll(a, e):
    l = a.uniq("poll")
    a(f"s_cmp_lg_u32 s{sWAVE}, 8")
    a(f"s_cbranch_scc1 {l}_done")
    a(f"v_and_b32 v2, 31, v1")
    a(f"v_lshlrev_b32 v2, 4, v2")
    a(f"s_and_b32 s{sT0}, s2, 7")
    a(f"s_lshl_b32 s{sT0}, s{sT0}, 10")
    a(f"s_add_u32 s{sT0}, s{sT0}, {WS_FL + e*8192}")
    a(f"s_mov_b32 s{sCNT}, 0")
    a.label(f"{l}_loop")
    a(f"buffer_load_dwordx4 v[12:15], v2, s[{S_WS}:{S_WS+3}], s{sT0} offen sc1")
    a(f"s_add_u32 s{sCNT}, s{sCNT}, 1")
    a(f"s_waitcnt vmcnt(0)")
    a(f"v_xor_b32 v12, s{sNONCE}, v12")
    a(f"v_xor_b32 v13, s{sNONCE}, v13")
    a(f"v_xor_b32 v14, s{sNONCE}, v14")
    a(f"v_xor_b32 v15, s{sNONCE}, v15")
    a(f"v_or3_b32 v12, v12, v13, v14")
    a(f"v_or_b32 v12, v12, v15")
    a(f"v_cmp_ne_u32 vcc, 0, v12")
    a(f"s_cmp_ge_u32 s{sCNT}, {SPIN_MAX}")
    a(f"s_cbranch_scc1 {l}_done")
    a(f"s_cbranch_vccnz {l}_loop")
    a.label(f"{l}_done")
    a("s_barrier")


def any_sentinel(a, regs, t):
    regs = list(regs)
    a(f"v_max3_u32 v{t}, v{regs[0]}, v{regs[1]}, v{regs[2]}")
    i = 3
    while i + 1 < len(regs):
        a(f"v_max3_u32 v{t}, v{t}, v{regs[i]}, v{regs[i+1]}")
        i += 2
    if i < len(regs):
        a(f"v_max_u32 v{t}, v{t}, v{regs[i]}")
    a(f"v_cmp_eq_u32 vcc, -1, v{t}")


def retry_tail(a, l):
    a(f"s_add_u32 s{sCNT}, s{sCNT}, 1")
    a(f"s_cmp_ge_u32 s{sCNT}, {SPIN_MAX}")
    a(f"s_cbranch_scc1 {l}_ok")
    a(f"s_cbranch_vccnz {l}_retry")
    a.label(f"{l}_ok")


def nonce_wait(a, first_issued):
    l = a.uniq("nw")
    a(f"s_mov_b32 s{sCNT}, 0")
    a(f"v_mov_b32 v14, 0")
    if first_issued:
        a(f"s_branch {l}_chk")
    a.label(f"{l}_loop")
    a(f"buffer_load_dword v13, v14, s[{S_DBG}:{S_DBG+3}], 0 offen sc1")
    a.label(f"{l}_chk")
    a(f"s_add_u32 s{sCNT}, s{sCNT}, 1")
    a(f"s_waitcnt vmcnt(0)")
    a(f"v_readfirstlane_b32 s{sNONCE}, v13")
    a(f"s_cmp_ge_u32 s{sCNT}, {SPIN_MAX}")
    a(f"s_cbranch_scc1 {l}_done")
    a(f"s_cmp_eq_u32 s{sNONCE}, 0")
    a(f"s_cbranch_scc1 {l}_loop")
    a.label(f"{l}_done")


def role_a(a):
    R = "A"
    a(f"""
    s_and_b32 s{sH}, s2, 7
    s_lshr_b32 s{sT0}, s2, 3
    s_and_b32 s{sT0}, s{sT0}, 3
    s_lshl_b32 s{sT0}, s{sT0}, 3
    s_add_u32 s{sH}, s{sH}, s{sT0}
    s_lshr_b32 s{sJ}, s2, 5
    s_mov_b32 s{sIDX}, s2
    v_lshrrev_b32 v5, 4, v0
    v_and_b32 v6, 15, v0
    v_lshrrev_b32 v7, 4, v1
    v_mul_u32_u24 v10, 911, v0
    v_lshrrev_b32 v10, 16, v10
    v_mul_u32_u24 v11, 72, v10
    v_sub_u32 v11, v0, v11
    v_lshlrev_b32 v8, 13, v6
    v_lshl_add_u32 v8, v7, 4, v8
    s_lshl_b32 s{sT0}, s{sJ}, 7
    s_lshl_b32 s{sT1}, s{sWAVE}, 4
    s_add_u32 s{sT0}, s{sT0}, s{sT1}
    s_lshl_b32 s{sT0}, s{sT0}, 13
    s_lshl_b32 s{sT1}, s{sH}, 8
    s_add_u32 s{sT0}, s{sT0}, s{sT1}
    s_mov_b32 s{sF}, s{sT0}
    v_lshlrev_b32 v4, 3, v5
    s_mul_i32 s{sT1}, s{sJ}, 288
    v_lshlrev_b32 v3, 15, v5
    v_lshl_add_u32 v3, v6, 4, v3
    s_mul_i32 s{sT0}, s{sJ}, {144*8192}
    s_lshl_b32 s{sT2}, s{sH}, 8
    s_add_u32 s{sT0}, s{sT0}, s{sT2}
    buffer_load_dwordx2 v[128:129], v4, s[{S_X}:{S_X+3}], s{sT1} offen
    buffer_load_dwordx2 v[136:137], v4, s[{S_X}:{S_X+3}], s{sT1} offen offset:1152
    """)
    for i in range(4):
        a(f"buffer_load_dwordx4 v[{64+4*i}:{67+4*i}], v3, s[{S_WQ}:{S_WQ+3}], s{sT0} offen nt")
        if i < 3:
            a(f"s_add_u32 s{sT0}, s{sT0}, 8192")
    a(f"""
    v_mov_b32 v14, 0
    s_cmp_lg_u32 s{sWAVE}, 8
    s_cbranch_scc1 a0_non
    buffer_load_dword v13, v14, s[{S_DBG}:{S_DBG+3}], 0 offen sc1
    a0_non:
    """)
    a(f"""
    s_lshl_b32 s{sQA}, s{sJ}, 2
    s_and_b32 s{sT2}, s{sWAVE}, 7
    s_lshr_b32 s{sT1}, s{sT2}, 1
    s_add_u32 s{sQA}, s{sQA}, s{sT1}
    s_lshl_b32 s{sQA}, s{sQA}, 1
    s_lshr_b32 s{sT1}, s{sH}, 4
    s_add_u32 s{sQA}, s{sQA}, s{sT1}
    s_lshl_b32 s{sQA}, s{sQA}, 6
    s_and_b32 s{sT1}, s{sT2}, 1
    s_lshl_b32 s{sT1}, s{sT1}, 5
    s_add_u32 s{sQA}, s{sQA}, s{sT1}
    s_and_b32 s{sT1}, s{sH}, 15
    s_add_u32 s{sQA}, s{sQA}, s{sT1}
    s_lshl_b32 s{sQA}, s{sQA}, 4
    v_lshlrev_b32 v9, 15, v6
    v_lshrrev_b32 v2, 1, v7
    v_lshl_add_u32 v9, v2, 8, v9
    v_and_b32 v2, 1, v7
    v_lshl_add_u32 v9, v2, 3, v9
    """)
    for i in range(16):
        a(f"v_mov_b32 v{144+i}, 0")
    dot_rows(a, 64, 4, [128, 136], [144, 152], 20, waits=[2, 0])
    stamp(a, R, "dot")
    a(f"""
    s_nop 3
    v_lshlrev_b32 v4, 10, v5
    v_lshl_add_u32 v4, v6, 5, v4
    ds_write_b128 v4, v[144:147] offset:{LA_R1}
    ds_write_b128 v4, v[148:151] offset:{LA_R1+16}
    ds_write_b128 v4, v[152:155] offset:{LA_R1+512}
    ds_write_b128 v4, v[156:159] offset:{LA_R1+528}
    s_cmp_lg_u32 s{sWAVE}, 8
    s_cbranch_scc1 a1_non
    """)
    nonce_wait(a, True)
    a(f"ds_write_b32 v14, v13 offset:{LA_SM+1024}")
    a.label("a1_non")
    a("""
    s_waitcnt lgkmcnt(0)
    s_barrier
    """)
    a(f"""
    v_mov_b32 v14, 0
    ds_read_b32 v13, v14 offset:{LA_SM+1024}
    s_waitcnt lgkmcnt(0)
    v_readfirstlane_b32 s{sNONCE}, v13
    """)
    stamp(a, R, "bar1")
    if BDELAY == "flag":
        signal(a, 3)
    skip_if_wave_ge(a, 4, "a1_skip_pub")
    a("v_lshlrev_b32 v4, 2, v0")
    for g in range(36):
        a(f"ds_read_b32 v{80+g}, v4 offset:{LA_R1+g*1024}")
    a("s_waitcnt lgkmcnt(0)")
    sum_tree(a, range(80, 116))
    a(f"""
    v_mov_b32 v12, v80
    v_lshlrev_b32 v4, 3, v0
    s_lshl_b32 s{sT0}, s{sH}, 13
    s_add_u32 s{sT0}, s{sT0}, {WS_QP}
    s_lshl_b32 s{sT1}, s{sJ}, 11
    s_add_u32 s{sT1}, s{sT1}, s{sT0}
    buffer_store_dwordx2 v[12:13], v4, s[{S_WS}:{S_WS+3}], s{sT1} offen sc1
    s_mov_b32 s{sCNT}, 0
    """)
    a.label("a1_skip_pub")
    a("s_barrier")
    stamp(a, R, "pub")
    a(f"""
    s_cmp_ge_u32 s{sWAVE}, 8
    s_cbranch_scc1 a0_nowuk
    buffer_load_dwordx4 v[48:51], v8, s[{S_WUK}:{S_WUK+3}], s{sF} offen nt
    buffer_load_dwordx4 v[52:55], v8, s[{S_WUK}:{S_WUK+3}], s{sF} offen offset:64 nt
    buffer_load_dwordx4 v[56:59], v8, s[{S_WUK}:{S_WUK+3}], s{sF} offen offset:128 nt
    buffer_load_dwordx4 v[60:63], v8, s[{S_WUK}:{S_WUK+3}], s{sF} offen offset:192 nt
    a0_nowuk:
    """)
    skip_if_wave_ge(a, 4, "a1_skip_red")
    a.label("qx_retry")
    a(f"""
    buffer_load_dwordx2 v[16:17], v4, s[{S_WS}:{S_WS+3}], s{sT0} offen sc1
    buffer_load_dwordx2 v[18:19], v4, s[{S_WS}:{S_WS+3}], s{sT0} offen offset:2048 sc1
    s_add_u32 s{sT1}, s{sT0}, 4096
    buffer_load_dwordx2 v[20:21], v4, s[{S_WS}:{S_WS+3}], s{sT1} offen sc1
    buffer_load_dwordx2 v[22:23], v4, s[{S_WS}:{S_WS+3}], s{sT1} offen offset:2048 sc1
    s_waitcnt vmcnt(0)
    v_xor_b32 v17, v17, v13
    v_xor_b32 v19, v19, v13
    v_xor_b32 v21, v21, v13
    v_xor_b32 v23, v23, v13
    v_or3_b32 v17, v17, v19, v21
    v_or_b32 v17, v17, v23
    v_cmp_ne_u32 vcc, 0, v17
    """)
    retry_tail(a, "qx")
    a(f"""
    v_add_f32 v16, v16, v18
    v_add_f32 v20, v20, v22
    v_add_f32 v16, v16, v20
    v_cvt_pk_bf16_f32 v16, v16, v16
    v_lshlrev_b32 v4, 1, v0
    ds_write_b16 v4, v16 offset:{LA_SM}
    s_waitcnt lgkmcnt(0)
    """)
    a.label("a1_skip_red")
    a("s_barrier")
    stamp(a, R, "qred")
    skip_if_wave_ge(a, 8, "a1_done")
    for i in range(20):
        a(f"v_mov_b32 v{16+i}, 0")
    a(f"""
    v_lshlrev_b32 v8, 8, v6
    v_lshl_add_u32 v8, v7, 4, v8
    v_cmp_gt_u32 vcc, 2, v6
    s_and_saveexec_b64 s[{sEX}:{sEX+1}], vcc
    ds_read_b128 v[16:19], v8 offset:{LA_SM}
    ds_read_b128 v[20:23], v8 offset:{LA_SM+64}
    ds_read_b128 v[24:27], v8 offset:{LA_SM+128}
    ds_read_b128 v[28:31], v8 offset:{LA_SM+192}
    s_mov_b64 exec, s[{sEX}:{sEX+1}]
    s_waitcnt vmcnt(0) lgkmcnt(0)
    s_nop 4
    v_mfma_f32_16x16x32_bf16 v[32:35], v[48:51], v[16:19], v[32:35]
    v_mfma_f32_16x16x32_bf16 v[32:35], v[52:55], v[20:23], v[32:35]
    v_mfma_f32_16x16x32_bf16 v[32:35], v[56:59], v[24:27], v[32:35]
    v_mfma_f32_16x16x32_bf16 v[32:35], v[60:63], v[28:31], v[32:35]
    s_nop 7
    s_nop 1
    v_cvt_pk_bf16_f32 v36, v32, v33
    v_cvt_pk_bf16_f32 v37, v34, v35
    v_lshlrev_b32 v9, 8, v6
    v_lshl_add_u32 v9, v7, 3, v9
    s_lshl_b32 s{sT1}, s{sWAVE}, 5
    v_add_u32 v9, s{sT1}, v9
    v_cmp_gt_u32 vcc, 2, v6
    s_and_saveexec_b64 s[{sEX}:{sEX+1}], vcc
    ds_write_b64 v9, v[36:37] offset:{LA_SM+512}
    s_mov_b64 exec, s[{sEX}:{sEX+1}]
    s_waitcnt lgkmcnt(0)
    """)
    a.label("a1_done")
    a("s_barrier")
    stamp(a, R, "pre1")
    a(f"""
    s_cmp_lg_u32 s{sWAVE}, 8
    s_cbranch_scc1 a1_nost
    v_and_b32 v2, 31, v1
    v_lshlrev_b32 v3, 4, v2
    ds_read_b128 v[16:19], v3 offset:{LA_SM+512}
    v_lshrrev_b32 v4, 4, v2
    v_lshlrev_b32 v4, 15, v4
    v_and_b32 v2, 15, v2
    v_lshl_add_u32 v4, v2, 4, v4
    s_lshl_b32 s{sT0}, s{sH}, 10
    s_lshl_b32 s{sT1}, s{sJ}, 8
    s_add_u32 s{sT0}, s{sT0}, s{sT1}
    v_cmp_gt_u32 vcc, 32, v1
    s_and_saveexec_b64 s[{sEX}:{sEX+1}], vcc
    s_waitcnt lgkmcnt(0)
    buffer_store_dwordx4 v[16:19], v4, s[{S_WS}:{S_WS+3}], s{sT0} offen sc1
    s_mov_b64 exec, s[{sEX}:{sEX+1}]
    s_waitcnt vmcnt(0)
    a1_nost:
    """)
    signal(a, 0)
    a("s_barrier")
    stamp(a, R, "sig1")
    skip_if_wave_ge(a, 8, "a_nowuv")
    a(f"""
    v_lshlrev_b32 v8, 13, v7
    v_lshl_add_u32 v8, v6, 4, v8
    s_lshl_b32 s{sT0}, s{sJ}, 20
    s_lshl_b32 s{sT1}, s{sH}, 8
    s_add_u32 s{sT0}, s{sT0}, s{sT1}
    s_lshl_b32 s{sT1}, s{sWAVE}, 17
    s_add_u32 s{sT0}, s{sT0}, s{sT1}
    s_lshl_b32 s{sT1}, s{sWAVE}, 12
    """)
    for u in range(4):
        a(f"s_mov_b32 m0, s{sT1}")
        a(f"s_add_u32 s{sT1}, s{sT1}, 1024")
        a(f"buffer_load_dwordx4 v8, s[{S_WUV}:{S_WUV+3}], s{sT0} offen nt lds")
        a(f"s_add_u32 s{sT0}, s{sT0}, 32768")
    a.label("a_nowuv")
    a(f"""
    v_lshlrev_b32 v8, 4, v1
    s_mul_i32 s{sT0}, s{sH}, 147456
    s_mul_i32 s{sT1}, s{sWAVE}, 12288
    s_add_u32 s{sT1}, s{sT1}, 36864
    s_add_u32 s{sT0}, s{sT0}, s{sT1}
    """)
    for u in range(12):
        a(f"s_mov_b32 m0, s{sT1}")
        a(f"s_add_u32 s{sT1}, s{sT1}, 1024")
        a(f"buffer_load_dwordx4 v8, s[{S_WO}:{S_WO+3}], s{sT0} offen {WOPOL} lds")
        a(f"s_add_u32 s{sT0}, s{sT0}, 1024")
    a("s_waitcnt vmcnt(12)")
    a("s_barrier")
    a(f"""
    v_lshrrev_b32 v2, 2, v6
    v_lshl_add_u32 v2, v7, 3, v2
    v_and_b32 v3, 3, v1
    v_lshlrev_b32 v3, 3, v3
    """)
    skip_if_wave_ge(a, 8, "a_nowuv2")
    a(f"""
    v_lshl_add_u32 v4, v2, 8, v3
    s_lshl_b32 s{sT1}, s{sWAVE}, 5
    v_add_u32 v4, s{sT1}, v4
    """)
    for ks in range(4):
        for t in range(2):
            a(f"ds_read_b64_tr_b16 v[{48+4*ks+2*t}:{48+4*ks+2*t+1}], v4 offset:{(ks*32+4*t)*256}")
    a("s_waitcnt lgkmcnt(0)")
    a.label("a_nowuv2")
    a("s_barrier")
    a(f"""
    s_mul_i32 s{sT0}, s{sH}, 147456
    s_lshl_b32 s{sT1}, s{sWAVE}, 12
    s_add_u32 s{sT0}, s{sT0}, s{sT1}
    """)
    for u in range(4):
        a(f"s_mov_b32 m0, s{sT1}")
        a(f"s_add_u32 s{sT1}, s{sT1}, 1024")
        a(f"buffer_load_dwordx4 v8, s[{S_WO}:{S_WO+3}], s{sT0} offen {WOPOL} lds")
        a(f"s_add_u32 s{sT0}, s{sT0}, 1024")
    a(f"""
    v_mul_u32_u24 v4, 1152, v2
    v_add_u32 v4, v4, v3
    s_lshl_b32 s{sT1}, s{sWAVE}, 7
    v_add_u32 v4, s{sT1}, v4
    v_add_u32 v9, {64*1152}, v4
    s_waitcnt vmcnt(0)
    s_barrier
    """)
    for nt in range(4):
        for ks in range(4):
            for t in range(2):
                r = 64 + 16 * nt + 4 * ks + 2 * t
                base = 4 if ks < 2 else 9
                off = ((ks & 1) * 32 + 4 * t) * 1152 + nt * 32
                a(f"ds_read_b64_tr_b16 v[{r}:{r+1}], v{base} offset:{off}")
        a("s_waitcnt lgkmcnt(0)")
    a("s_barrier")
    stamp(a, R, "ffn")
    poll(a, 1)
    stamp(a, R, "e2")
    L3_CC = LA_SM
    L3_PC = LA_SM + 512
    L3_P1 = LA_R1
    skip_if_wave_ge(a, 8, "p3_s1skip")
    a(f"""
    v_lshlrev_b32 v4, 17, v5
    v_and_b32 v12, 15, v5
    v_lshl_add_u32 v4, v6, 4, v4
    s_lshl_b32 s{sT0}, s{sH}, 10
    s_lshl_b32 s{sT1}, s{sJ}, 8
    s_add_u32 s{sT0}, s{sT0}, s{sT1}
    s_add_u32 s{sT0}, s{sT0}, {WS_OP}
    v_lshlrev_b32 v3, 3, v1
    s_lshr_b32 s{sT1}, s{sWAVE}, 2
    s_lshl_b32 s{sT1}, s{sT1}, 5
    s_add_u32 s{sT1}, s{sT1}, s{sH}
    s_lshl_b32 s{sT1}, s{sT1}, 9
    s_add_u32 s{sT1}, s{sT1}, {WS_ML}
    buffer_load_dwordx2 v[32:33], v3, s[{S_WS}:{S_WS+3}], s{sT1} offen sc1
    """)
    for u in range(4):
        a(f"buffer_load_dwordx4 v[{16+4*u}:{19+4*u}], v4, s[{S_WS}:{S_WS+3}], s{sT0} offen sc1")
        a(f"s_add_u32 s{sT0}, s{sT0}, 32768")
    a(f"""
    v_lshlrev_b32 v12, 4, v12
    s_waitcnt vmcnt(4)
    v_mov_b32 v36, v32
    """)
    wave_reduce(a, "v_max_f32", 36, 37)
    a("""
    v_sub_f32 v32, v32, v36
    v_exp_f32 v32, v32
    s_nop 0
    v_mul_f32 v36, v32, v33
    """)
    wave_reduce(a, "v_add_f32", 36, 37)
    a(f"""
    v_rcp_f32 v36, v36
    s_nop 0
    v_mul_f32 v36, v32, v36
    ds_bpermute_b32 v32, v12, v36
    ds_bpermute_b32 v33, v12, v36 offset:4
    ds_bpermute_b32 v34, v12, v36 offset:8
    ds_bpermute_b32 v35, v12, v36 offset:12
    s_waitcnt vmcnt(0) lgkmcnt(0)
    """)
    for u in range(4):
        for q in range(4):
            a(f"v_lshlrev_b32 v36, 16, v{16+4*u+q}")
            a(f"v_and_b32 v37, 0xffff0000, v{16+4*u+q}")
            if u == 0:
                a(f"v_mul_f32 v{40+2*q}, v32, v36")
                a(f"v_mul_f32 v{41+2*q}, v32, v37")
            else:
                a(f"v_fmac_f32 v{40+2*q}, v{32+u}, v36")
                a(f"v_fmac_f32 v{41+2*q}, v{32+u}, v37")
    a(f"""
    v_lshlrev_b32 v4, 9, v5
    v_lshl_add_u32 v4, v6, 5, v4
    ds_write_b128 v4, v[40:43] offset:{L3_P1}
    ds_write_b128 v4, v[44:47] offset:{L3_P1+16}
    s_waitcnt lgkmcnt(0)
    """)
    a.label("p3_s1skip")
    a("s_barrier")
    stamp(a, R, "s1")
    skip_if_wave_ge(a, 4, "p3_r1skip")
    a(f"""
    v_and_b32 v4, 127, v0
    v_lshlrev_b32 v4, 2, v4
    v_lshrrev_b32 v12, 7, v0
    v_lshl_add_u32 v4, v12, 13, v4
    """)
    for g in range(16):
        a(f"ds_read_b32 v{16+g}, v4 offset:{L3_P1+g*512}")
    a("s_waitcnt lgkmcnt(0)")
    sum_tree(a, range(16, 32))
    a(f"""
    v_cvt_pk_bf16_f32 v16, v16, v16
    v_lshlrev_b32 v4, 1, v0
    ds_write_b16 v4, v16 offset:{L3_CC}
    s_waitcnt lgkmcnt(0)
    """)
    a.label("p3_r1skip")
    a(f"""
    v_lshlrev_b32 v8, 8, v6
    v_lshl_add_u32 v8, v7, 4, v8
    """)
    for i in range(20):
        a(f"v_mov_b32 v{16+i}, 0")
    a("s_barrier")
    stamp(a, R, "r1")
    skip_if_wave_ge(a, 8, "p3_s2skip")
    a(f"""
    v_cmp_gt_u32 vcc, 2, v6
    s_and_saveexec_b64 s[{sEX}:{sEX+1}], vcc
    ds_read_b128 v[16:19], v8 offset:{L3_CC}
    ds_read_b128 v[20:23], v8 offset:{L3_CC+64}
    ds_read_b128 v[24:27], v8 offset:{L3_CC+128}
    ds_read_b128 v[28:31], v8 offset:{L3_CC+192}
    s_mov_b64 exec, s[{sEX}:{sEX+1}]
    s_waitcnt lgkmcnt(0)
    s_nop 4
    v_mfma_f32_16x16x32_bf16 v[32:35], v[16:19], v[48:51], v[32:35]
    v_mfma_f32_16x16x32_bf16 v[32:35], v[20:23], v[52:55], v[32:35]
    v_mfma_f32_16x16x32_bf16 v[32:35], v[24:27], v[56:59], v[32:35]
    v_mfma_f32_16x16x32_bf16 v[32:35], v[28:31], v[60:63], v[32:35]
    s_lshl_b32 s{sT1}, s{sWAVE}, 5
    v_lshlrev_b32 v4, 1, v1
    v_add_u32 v4, s{sT1}, v4
    s_nop 6
    v_cvt_pk_bf16_f32 v36, v32, v33
    v_cmp_gt_u32 vcc, 16, v1
    s_and_saveexec_b64 s[{sEX}:{sEX+1}], vcc
    ds_write_b16 v4, v36 offset:{L3_PC}
    ds_write_b16_d16_hi v4, v36 offset:{L3_PC+256}
    s_mov_b64 exec, s[{sEX}:{sEX+1}]
    s_waitcnt lgkmcnt(0)
    """)
    a.label("p3_s2skip")
    for i in range(16):
        a(f"v_mov_b32 v{16+i}, 0")
    for i in range(16):
        a(f"v_mov_b32 v{32+i}, 0")
    a("s_barrier")
    stamp(a, R, "s2")
    a(f"""
    v_cmp_gt_u32 vcc, 2, v6
    s_and_saveexec_b64 s[{sEX}:{sEX+1}], vcc
    ds_read_b128 v[16:19], v8 offset:{L3_PC}
    ds_read_b128 v[20:23], v8 offset:{L3_PC+64}
    ds_read_b128 v[24:27], v8 offset:{L3_PC+128}
    ds_read_b128 v[28:31], v8 offset:{L3_PC+192}
    s_mov_b64 exec, s[{sEX}:{sEX+1}]
    s_waitcnt lgkmcnt(0)
    s_nop 4
    """)
    for ks in range(4):
        for nt in range(4):
            r = 64 + 16 * nt + 4 * ks
            a(f"v_mfma_f32_16x16x32_bf16 v[{32+4*nt}:{35+4*nt}], v[{r}:{r+3}], v[{16+4*ks}:{19+4*ks}], v[{32+4*nt}:{35+4*nt}]")
    a(f"""
    v_mul_u32_u24 v4, 2304, v6
    v_lshl_add_u32 v4, v7, 4, v4
    s_lshl_b32 s{sT1}, s{sWAVE}, 8
    v_add_u32 v4, s{sT1}, v4
    s_mul_i32 s{sT0}, s2, 9216
    s_add_u32 s{sT0}, s{sT0}, {WS_AP}
    v_cmp_gt_u32 vcc, 2, v6
    v_lshlrev_b32 v3, 3, v0
    v_lshlrev_b32 v2, 4, v0
    v_mov_b32 v17, s{sNONCE}
    v_mov_b32 v19, s{sNONCE}
    s_and_saveexec_b64 s[{sEX}:{sEX+1}], vcc
    ds_write_b128 v4, v[32:35] offset:{LA_R1}
    ds_write_b128 v4, v[36:39] offset:{LA_R1+64}
    ds_write_b128 v4, v[40:43] offset:{LA_R1+128}
    ds_write_b128 v4, v[44:47] offset:{LA_R1+192}
    s_mov_b64 exec, s[{sEX}:{sEX+1}]
    s_waitcnt lgkmcnt(0)
    s_barrier
    ds_read_b64 v[20:21], v3 offset:{LA_R1}
    s_waitcnt lgkmcnt(0)
    v_mov_b32 v16, v20
    v_mov_b32 v18, v21
    buffer_store_dwordx4 v[16:19], v2, s[{S_WS}:{S_WS+3}], s{sT0} offen sc1
    """)
    stamp(a, R, "s3")
    stamp(a, R, "pre3")
    stamp(a, R, "sig3")
    stamp_dump(a)
    a("s_endpgm")


def ffn_prefetch(a, part):
    l = a.uniq("ffnp")
    if part == 0:
        a(f"""
        s_sub_u32 s{sF}, s{sT3}, 36
        v_mul_u32_u24 v10, 911, v0
        v_lshrrev_b32 v10, 16, v10
        v_mul_u32_u24 v11, 72, v10
        v_sub_u32 v11, v0, v11
        """)
    a(f"""
    s_cmp_ge_u32 s{sF}, 72
    s_cbranch_scc1 {l}
    """)
    if part < 2:
        a(f"""
        v_lshrrev_b32 v5, 3, v0
        v_and_b32 v6, 7, v0
        v_mov_b32 v4, 73728
        v_mul_lo_u32 v4, v5, v4
        v_lshl_add_u32 v4, v6, 4, v4
        s_lshl_b32 s{sT2}, s{sF}, 7
        s_add_u32 s{sT2}, s{sT2}, {part*4*9216}
        """)
        for i in range(4):
            r = 104 + 16 * part + 4 * i
            a(f"buffer_load_dwordx4 v[{r}:{r+3}], v4, s[{S_W1}:{S_W1+3}], s{sT2} offen nt")
            if i < 3:
                a(f"s_add_u32 s{sT2}, s{sT2}, 9216")
    else:
        a(f"""
        v_mul_u32_u24 v4, 9216, v10
        v_lshl_add_u32 v4, v11, 4, v4
        s_mul_i32 s{sT2}, s{sF}, 73728
        s_add_u32 s{sT2}, s{sT2}, {(part-2)*4608}
        """)
        for u in range(4):
            r = 136 + 16 * (part - 2) + 4 * u
            a(f"buffer_load_dwordx4 v[{r}:{r+3}], v4, s[{S_W2}:{S_W2+3}], s{sT2} offen offset:{u*1152} nt")
    a.label(l)


def ffn_b(a):
    a(f"""
    s_cmp_ge_u32 s{sF}, 72
    s_cbranch_scc1 ffn_done
    v_lshrrev_b32 v2, 3, v0
    v_and_b32 v3, 7, v0
    v_lshlrev_b32 v4, 4, v2
    buffer_load_dwordx4 v[88:91], v4, s[{S_X}:{S_X+3}], 0 offen
    buffer_load_dwordx4 v[92:95], v4, s[{S_X}:{S_X+3}], 0 offen offset:1152
    v_lshlrev_b32 v9, 1, v1
    s_lshl_b32 s{sT0}, s{sF}, 7
    buffer_load_ushort v12, v9, s[{S_B1}:{S_B1+3}], s{sT0} offen
    s_barrier
    """)
    ffn_prefetch(a, 2)
    ffn_prefetch(a, 3)
    for i in range(16):
        a(f"v_mov_b32 v{16+i}, 0")
    a("s_waitcnt vmcnt(8)")
    dot_rows(a, 104, 8, [88, 92], [16, 24], 14)
    a(f"""
    s_nop 3
    v_lshlrev_b32 v4, 9, v2
    v_lshl_add_u32 v4, v3, 5, v4
    ds_write_b128 v4, v[16:19] offset:{LA_R1}
    ds_write_b128 v4, v[20:23] offset:{LA_R1+16}
    ds_write_b128 v4, v[24:27] offset:{LA_R1+256}
    ds_write_b128 v4, v[28:31] offset:{LA_R1+272}
    s_waitcnt lgkmcnt(0)
    s_barrier
    """)
    skip_if_wave_ge(a, 2, "ffn_skip_red")
    a("v_lshlrev_b32 v4, 2, v0")
    regs = list(range(16, 88))
    for g in range(72):
        a(f"ds_read_b32 v{regs[g]}, v4 offset:{LA_R1+g*512}")
    a("s_waitcnt lgkmcnt(0)")
    sum_tree(a, regs)
    round_bf16(a, 16)
    a("""
    v_lshlrev_b32 v12, 16, v12
    v_add_f32 v16, v16, v12
    """)
    round_bf16(a, 16)
    a(f"""
    v_max_f32 v16, 0, v16
    v_mul_f32 v16, v16, v16
    v_cvt_pk_bf16_f32 v16, v16, v16
    v_lshlrev_b32 v4, 1, v0
    ds_write_b16 v4, v16 offset:{LA_SM}
    s_waitcnt lgkmcnt(0)
    """)
    a.label("ffn_skip_red")
    a(f"""
    s_barrier
    v_lshlrev_b32 v4, 4, v10
    ds_read_b128 v[88:91], v4 offset:{LA_SM}
    ds_read_b128 v[92:95], v4 offset:{LA_SM+128}
    """)
    for i in range(16):
        a(f"v_mov_b32 v{16+i}, 0")
    a("s_waitcnt vmcnt(0) lgkmcnt(0)")
    dot_rows(a, 136, 8, [88, 92], [16, 24], 14)
    a(f"""
    s_nop 3
    v_mul_u32_u24 v4, 4608, v10
    v_lshl_add_u32 v4, v11, 5, v4
    ds_write_b128 v4, v[16:19] offset:{LA_R1}
    ds_write_b128 v4, v[20:23] offset:{LA_R1+16}
    ds_write_b128 v4, v[24:27] offset:{LA_R1+2304}
    ds_write_b128 v4, v[28:31] offset:{LA_R1+2320}
    s_waitcnt lgkmcnt(0)
    s_barrier
    v_lshlrev_b32 v4, 4, v0
    v_cmp_gt_u32 vcc, 288, v0
    s_and_saveexec_b64 s[{sEX}:{sEX+1}], vcc
    s_cbranch_execz ffn_st_skip
    """)
    for r in range(8):
        a(f"ds_read_b128 v[{16+4*r}:{19+4*r}], v4 offset:{LA_R1+r*4608}")
    a("s_waitcnt lgkmcnt(0)")
    for k in range(4):
        sum_tree(a, [16 + 4 * r + k for r in range(8)])
    a(f"""
    s_mul_i32 s{sT0}, s{sF}, 4608
    s_add_u32 s{sT0}, s{sT0}, {WS_FFNP}
    buffer_store_dwordx4 v[16:19], v4, s[{S_WS}:{S_WS+3}], s{sT0} offen sc1
    """)
    a.label("ffn_st_skip")
    a(f"""
    s_mov_b64 exec, s[{sEX}:{sEX+1}]
    s_waitcnt vmcnt(0)
    s_barrier
    """)
    a.label("ffn_done")
    signal(a, 4)


def role_b(a):
    R = "B"
    a(f"""
    s_sub_u32 s{sT3}, s2, 128
    s_lshr_b32 s{sB}, s{sT3}, 6
    s_and_b32 s{sSPLIT}, s{sT3}, 63
    s_mov_b32 s{sIDX}, s{sT3}
    v_lshlrev_b32 v8, 4, v1
    v_mov_b32 v12, -1
    v_mov_b32 v13, -1
    v_mov_b32 v14, -1
    v_mov_b32 v15, -1
    s_cmp_lg_u32 s{sWAVE}, 8
    s_cbranch_scc1 b_dma
    v_lshlrev_b32 v28, 9, v1
    v_and_b32 v28, 0x3fff, v28
    s_lshl_b32 s{sT0}, s{sB}, 14
    s_lshl_b32 s{sT1}, s{sSPLIT}, 3
    s_add_u32 s{sT0}, s{sT0}, s{sT1}
    s_add_u32 s{sT0}, s{sT0}, {WS_ML}
    v_mov_b32 v14, 0
    """)
    nonce_wait(a, False)
    if BDELAY == "none":
        a("s_branch b_nodma")
        a.label("b_dma")
    else:
        a.label("b_dma")
        if BDELAY == "flag":
            poll(a, 3)
        else:
            a("s_barrier")
        skip_if_wave_ge(a, 8, "b_nodma")
    a(f"""
    s_lshl_b32 s{sT0}, s{sB}, 5
    s_lshl_b32 s{sT1}, s{sWAVE}, 2
    s_add_u32 s{sT0}, s{sT0}, s{sT1}
    s_lshl_b32 s{sT0}, s{sT0}, 6
    s_add_u32 s{sT0}, s{sT0}, s{sSPLIT}
    s_lshl_b32 s{sT0}, s{sT0}, 10
    s_add_u32 s{sT0}, s{sT0}, {WS_OP}
    """)
    a(f"""
    s_lshl_b32 s{sT0}, s{sT3}, 17
    s_lshl_b32 s{sT1}, s{sWAVE}, 14
    s_add_u32 s{sT0}, s{sT0}, s{sT1}
    """)
    for r in range(16):
        a(f"v_xor_b32 v{16+r}, {r*16}, v8")
    for r in range(16):
        a(f"s_mov_b32 m0, s{sT1}")
        a(f"s_add_u32 s{sT1}, s{sT1}, 1024")
        a(f"buffer_load_dwordx4 v{16+r}, s[{S_CKV}:{S_CKV+3}], s{sT0} offen nt lds")
        a(f"s_add_u32 s{sT0}, s{sT0}, 1024")
    a(f"""
    v_and_b32 v2, 15, v1
    v_lshrrev_b32 v7, 4, v1
    s_lshl_b32 s{sT1}, s{sWAVE}, 4
    v_add_u32 v3, s{sT1}, v2
    v_lshlrev_b32 v3, 10, v3
    """)
    for k4 in range(4):
        a(f"v_add_u32 v{12+k4}, {k4*4}, v7")
        a(f"v_xor_b32 v{12+k4}, v{12+k4}, v2")
        a(f"v_lshl_add_u32 v{12+k4}, v{12+k4}, 4, v3")
    a("s_waitcnt vmcnt(0)")
    for ks in range(16):
        a(f"ds_read_b128 v[{16+4*ks}:{19+4*ks}], v{12+(ks&3)} offset:{(ks>>2)*256}")
    a("s_waitcnt lgkmcnt(0)")
    a.label("b_nodma")
    stamp(a, R, "dma")
    poll(a, 0)
    stamp(a, R, "e1")
    a(f"""
    v_lshlrev_b32 v4, 4, v0
    s_lshl_b32 s{sT0}, s{sB}, 15
    """)
    skip_if_wave_ge(a, 8, "b_noqa")
    a(f"s_mov_b32 s{sT1}, s{sT0}")
    for u in range(4):
        a(f"buffer_load_dwordx4 v[{80+4*u}:{83+4*u}], v4, s[{S_WS}:{S_WS+3}], s{sT1} offen sc1")
        a(f"s_add_u32 s{sT1}, s{sT1}, 8192")
    a(f"""
    v_lshrrev_b32 v4, 2, v1
    v_lshlrev_b32 v4, 11, v4
    v_and_b32 v5, 3, v1
    v_lshl_add_u32 v4, v5, 8, v4
    v_add_u32 v4, {LB_R}, v4
    v_xor_b32 v5, s{sWAVE}, v2
    v_xor_b32 v6, 8, v5
    v_lshl_add_u32 v5, v5, 4, v4
    v_lshl_add_u32 v6, v6, 4, v4
    s_waitcnt vmcnt(0)
    ds_write_b128 v5, v[80:83]
    ds_write_b128 v6, v[84:87]
    ds_write_b128 v5, v[88:91] offset:1024
    ds_write_b128 v6, v[92:95] offset:1024
    s_waitcnt lgkmcnt(0)
    """)
    a.label("b_noqa")
    a("s_barrier")
    ffn_prefetch(a, 0)
    stamp(a, R, "qa")
    skip_if_wave_ge(a, 8, "b_qk_skip")
    a(f"v_lshlrev_b32 v9, 8, v7")
    a(f"v_add_u32 v9, {LB_R}, v9")
    for k4 in range(4):
        a(f"v_add_u32 v{12+k4}, {k4*4}, v7")
        a(f"v_xor_b32 v{12+k4}, v{12+k4}, v2")
        a(f"v_lshl_add_u32 v{12+k4}, v{12+k4}, 4, v9")
    for i in range(8):
        a(f"v_mov_b32 v{96+i}, 0")
    def qk_reads(ks):
        base = 80 + 8 * (ks & 1)
        a(f"ds_read_b128 v[{base}:{base+3}], v{12+(ks&3)} offset:{ks*2048}")
        a(f"ds_read_b128 v[{base+4}:{base+7}], v{12+(ks&3)} offset:{ks*2048+1024}")
    qk_reads(0)
    qk_reads(1)
    for ks in range(16):
        a(f"s_waitcnt lgkmcnt({2 if ks < 15 else 0})")
        base = 80 + 8 * (ks & 1)
        A_ = 16 + 4 * ks
        a(f"v_mfma_f32_16x16x32_bf16 v[96:99], v[{A_}:{A_+3}], v[{base}:{base+3}], v[96:99]")
        a(f"v_mfma_f32_16x16x32_bf16 v[100:103], v[{A_}:{A_+3}], v[{base+4}:{base+7}], v[100:103]")
        if ks + 2 < 16:
            a("s_nop 1")
            qk_reads(ks + 2)
    a(f"""
    v_lshrrev_b32 v84, 2, v2
    v_lshlrev_b32 v84, 2, v84
    v_lshrrev_b32 v85, 5, v1
    v_lshl_add_u32 v84, v85, 1, v84
    v_and_b32 v85, 1, v7
    v_lshlrev_b32 v85, 1, v85
    v_bfe_u32 v86, v1, 1, 1
    v_add_u32 v85, v85, v86
    s_and_b32 s{sT1}, s{sWAVE}, 1
    s_lshl_b32 s{sT1}, s{sT1}, 3
    v_add_u32 v85, s{sT1}, v85
    v_and_b32 v86, 1, v1
    v_lshlrev_b32 v86, 3, v86
    s_lshr_b32 s{sT1}, s{sWAVE}, 1
    s_lshl_b32 s{sT1}, s{sT1}, 8
    v_add_u32 v86, s{sT1}, v86
    """)
    for nt in range(2):
        for t in range(2):
            d = 12 + 2 * nt + t
            a(f"v_add_u32 v87, {t}, v84")
            a(f"v_add_u32 v88, {4*nt}, v85")
            a(f"v_xor_b32 v88, v88, v87")
            a(f"v_lshl_add_u32 v{d}, v87, 10, v86")
            a(f"v_lshl_add_u32 v{d}, v88, 4, v{d}")
    a(f"s_mov_b32 s{sT1}, {f32bits(SCALE_LOG2)}")
    for i in range(8):
        a(f"v_mul_f32 v{96+i}, s{sT1}, v{96+i}")
    a("""
    v_max3_f32 v80, v96, v97, v98
    v_max_f32 v80, v80, v99
    v_max3_f32 v81, v100, v101, v102
    v_max_f32 v81, v81, v103
    """)
    for ks in range(8):
        if ks == 4:
            for d in range(12, 16):
                a(f"v_add_u32 v{d}, 0x10000, v{d}")
        for nt in range(2):
            for t in range(2):
                r = 16 + 8 * ks + 4 * nt + 2 * t
                a(f"ds_read_b64_tr_b16 v[{r}:{r+1}], v{12+2*nt+t} offset:{(ks&3)*16384}")
    xrow_reduce(a, "v_max_f32", 80, 82)
    xrow_reduce(a, "v_max_f32", 81, 82)
    a.label("b_qk_skip")
    ffn_prefetch(a, 1)
    a("s_barrier")
    stamp(a, R, "qk")
    LB_P = LB_R
    skip_if_wave_ge(a, 8, "b_mx_skip")
    a(f"""
    v_lshlrev_b32 v12, 5, v2
    v_add_u32 v12, {LB_R}, v12
    s_lshl_b32 s{sT1}, s{sWAVE}, 2
    v_add_u32 v13, s{sT1}, v12
    ds_write_b32 v13, v80 offset:8192
    ds_write_b32 v13, v81 offset:{8192+512}
    s_waitcnt lgkmcnt(0)
    """)
    a.label("b_mx_skip")
    a("s_barrier")
    skip_if_wave_ge(a, 8, "b_sm_skip")
    a(f"""
    ds_read_b128 v[80:83], v12 offset:8192
    ds_read_b128 v[84:87], v12 offset:{8192+16}
    ds_read_b128 v[88:91], v12 offset:{8192+512}
    ds_read_b128 v[92:95], v12 offset:{8192+528}
    s_waitcnt lgkmcnt(0)
    v_max3_f32 v80, v80, v81, v82
    v_max3_f32 v80, v80, v83, v84
    v_max3_f32 v80, v80, v85, v86
    v_max_f32 v80, v80, v87
    v_max3_f32 v81, v88, v89, v90
    v_max3_f32 v81, v81, v91, v92
    v_max3_f32 v81, v81, v93, v94
    v_max_f32 v81, v81, v95
    """)
    for i in range(4):
        a(f"v_sub_f32 v{96+i}, v{96+i}, v80")
        a(f"v_sub_f32 v{100+i}, v{100+i}, v81")
    for i in range(8):
        a(f"v_exp_f32 v{96+i}, v{96+i}")
    a(f"""
    s_nop 0
    v_add_f32 v84, v96, v97
    v_add_f32 v85, v98, v99
    v_add_f32 v84, v84, v85
    v_add_f32 v85, v100, v101
    v_add_f32 v86, v102, v103
    v_add_f32 v85, v85, v86
    v_cvt_pk_bf16_f32 v86, v96, v97
    v_cvt_pk_bf16_f32 v87, v98, v99
    v_cvt_pk_bf16_f32 v88, v100, v101
    v_cvt_pk_bf16_f32 v89, v102, v103
    s_lshl_b32 s{sT1}, s{sWAVE}, 10
    s_add_u32 s{sT1}, s{sT1}, {LB_P}
    v_lshlrev_b32 v90, 4, v2
    v_lshl_add_u32 v90, v7, 1, v90
    v_add_u32 v90, s{sT1}, v90
    ds_write_b16 v90, v86
    ds_write_b16_d16_hi v90, v86 offset:8
    ds_write_b16 v90, v87 offset:512
    ds_write_b16_d16_hi v90, v87 offset:520
    ds_write_b16 v90, v88 offset:256
    ds_write_b16_d16_hi v90, v88 offset:264
    ds_write_b16 v90, v89 offset:768
    ds_write_b16_d16_hi v90, v89 offset:776
    """)
    xrow_reduce(a, "v_add_f32", 84, 91)
    xrow_reduce(a, "v_add_f32", 85, 91)
    a(f"""
    ds_write_b32 v13, v84 offset:9216
    ds_write_b32 v13, v85 offset:{9216+512}
    """)
    for i in range(32):
        a(f"v_mov_b32 v{136+i}, 0")
    a(f"""
    v_add_u32 v9, {LB_P}, v8
    s_waitcnt lgkmcnt(0)
    """)
    a.label("b_sm_skip")
    a("s_barrier")
    stamp(a, R, "sm")
    a(f"s_cmp_lt_u32 s{sWAVE}, 8")
    a("s_cbranch_scc1 b_pv_go")
    a(f"""
    v_lshlrev_b32 v28, 5, v1
    v_add_u32 v28, {LB_R}, v28
    v_cmp_gt_u32 vcc, 32, v1
    s_and_saveexec_b64 s[{sEX}:{sEX+1}], vcc
    ds_read_b128 v[12:15], v28 offset:8192
    ds_read_b128 v[16:19], v28 offset:{8192+16}
    ds_read_b128 v[20:23], v28 offset:9216
    ds_read_b128 v[24:27], v28 offset:{9216+16}
    s_waitcnt lgkmcnt(0)
    v_max3_f32 v12, v12, v13, v14
    v_max3_f32 v12, v12, v15, v16
    v_max3_f32 v12, v12, v17, v18
    v_max_f32 v12, v12, v19
    """)
    sum_tree(a, range(20, 28))
    a(f"""
    v_mov_b32 v13, v20
    v_lshlrev_b32 v28, 9, v1
    s_lshl_b32 s{sT0}, s{sB}, 14
    s_lshl_b32 s{sT1}, s{sSPLIT}, 3
    s_add_u32 s{sT0}, s{sT0}, s{sT1}
    s_add_u32 s{sT0}, s{sT0}, {WS_ML}
    buffer_store_dwordx2 v[12:13], v28, s[{S_WS}:{S_WS+3}], s{sT0} offen sc1
    s_mov_b64 exec, s[{sEX}:{sEX+1}]
    """)
    a("s_branch b_pv_skip")
    a.label("b_pv_go")
    def preads(ks):
        r = 80 + 4 * (ks % 6)
        a(f"ds_read_b128 v[{r}:{r+3}], v9 offset:{ks*1024}")
    for ks in range(6):
        preads(ks)
    for ks in range(8):
        outstanding_after = min(7, ks + 5) - ks if ks < 2 else 7 - ks
        a(f"s_waitcnt lgkmcnt({min(5, 7-ks)})")
        r = 80 + 4 * (ks % 6)
        for nt in range(2):
            c = 16 + 8 * ks + 4 * nt
            a(f"v_mfma_f32_32x32x16_bf16 v[{136+16*nt}:{151+16*nt}], v[{c}:{c+3}], v[{r}:{r+3}], v[{136+16*nt}:{151+16*nt}]")
        if ks + 6 < 8:
            a("s_nop 3")
            preads(ks + 6)
    a("s_nop 7")
    a("s_nop 7")
    for nt in range(2):
        b0_ = 136 + 16 * nt
        for qp in range(2):
            d = 16 + 8 * nt + 4 * qp
            a(f"v_cvt_pk_bf16_f32 v{d}, v{b0_+8*qp}, v{b0_+8*qp+1}")
            a(f"v_cvt_pk_bf16_f32 v{d+1}, v{b0_+8*qp+2}, v{b0_+8*qp+3}")
            a(f"v_cvt_pk_bf16_f32 v{d+2}, v{b0_+8*qp+4}, v{b0_+8*qp+5}")
            a(f"v_cvt_pk_bf16_f32 v{d+3}, v{b0_+8*qp+6}, v{b0_+8*qp+7}")
    a("s_nop 1")
    for nt in range(2):
        for qp in range(2):
            d = 16 + 8 * nt + 4 * qp
            a(f"v_permlane32_swap_b32 v{d}, v{d+2}")
            a(f"v_permlane32_swap_b32 v{d+1}, v{d+3}")
    a.label("b_pv_skip")
    a("s_barrier")
    stamp(a, R, "pv")
    skip_if_wave_ge(a, 8, "b_ow_skip")
    a(f"""
    v_and_b32 v32, 31, v1
    v_mul_u32_u24 v32, {OROW}, v32
    v_lshrrev_b32 v33, 5, v1
    v_lshl_add_u32 v32, v33, 4, v32
    s_lshl_b32 s{sT1}, s{sWAVE}, 7
    v_add_u32 v32, s{sT1}, v32
    ds_write_b128 v32, v[16:19]
    ds_write_b128 v32, v[20:23] offset:32
    ds_write_b128 v32, v[24:27] offset:64
    ds_write_b128 v32, v[28:31] offset:96
    s_waitcnt lgkmcnt(0)
    """)
    a.label("b_ow_skip")
    a("s_barrier")
    stamp(a, R, "ow")
    skip_if_wave_ge(a, 8, "b_ml")
    a(f"""
    s_mul_i32 s{sT1}, s{sWAVE}, {4*OROW}
    v_add_u32 v29, s{sT1}, v8
    ds_read_b128 v[32:35], v29
    ds_read_b128 v[36:39], v29 offset:{OROW}
    ds_read_b128 v[40:43], v29 offset:{2*OROW}
    ds_read_b128 v[44:47], v29 offset:{3*OROW}
    s_lshl_b32 s{sT0}, s{sT3}, 15
    s_lshl_b32 s{sT1}, s{sWAVE}, 12
    s_add_u32 s{sT0}, s{sT0}, s{sT1}
    s_add_u32 s{sT0}, s{sT0}, {WS_OP}
    """)
    for u in range(4):
        a(f"s_waitcnt lgkmcnt({3-u})")
        a(f"buffer_store_dwordx4 v[{32+4*u}:{35+4*u}], v8, s[{S_WS}:{S_WS+3}], s{sT0} offen offset:{u*1024} sc1")
    a("s_branch b_st_done")
    a.label("b_ml")
    a.label("b_st_done")
    stamp(a, R, "sti")
    a("s_waitcnt vmcnt(0)")
    stamp(a, R, "drn")
    a("s_barrier")
    stamp(a, R, "pre2")
    signal(a, 1)
    a("s_barrier")
    stamp(a, R, "sig2")
    ffn_b(a)
    stamp(a, R, "ffn")
    if STAMP:
        a(f"s_cmp_ge_u32 s{sT3}, 36")
        a("s_cbranch_scc0 b_p4")
        stamp_dump(a)
        a("s_endpgm")
        a.label("b_p4")
    else:
        a(f"""
        s_cmp_ge_u32 s{sT3}, 36
        s_cbranch_scc1 k_end
        """)
    LP_SM = 65536 - 256
    a(f"""
    s_cmp_ge_u32 s{sT3}, 18
    s_cselect_b32 s{sB}, 1, 0
    s_mul_i32 s{sJ}, s{sB}, 18
    s_sub_u32 s{sJ}, s{sT3}, s{sJ}
    s_cmp_lg_u32 s{sWAVE}, 4
    s_cbranch_scc1 p4_nogate
    v_mov_b32 v60, 0
    v_lshlrev_b32 v4, 5, v1
    s_mul_i32 s{sT0}, s{sB}, 1152
    v_cmp_gt_u32 vcc, 36, v1
    s_and_saveexec_b64 s[{sEX}:{sEX+1}], vcc
    buffer_load_dwordx4 v[64:67], v4, s[{S_X}:{S_X+3}], s{sT0} offen
    buffer_load_dwordx4 v[68:71], v4, s[{S_X}:{S_X+3}], s{sT0} offen offset:16
    buffer_load_dwordx4 v[72:75], v4, s[{S_GATE}:{S_GATE+3}], 0 offen
    buffer_load_dwordx4 v[76:79], v4, s[{S_GATE}:{S_GATE+3}], 0 offen offset:16
    s_waitcnt vmcnt(0)
    """)
    for q in range(8):
        a(f"v_lshlrev_b32 v61, 16, v{64+q}")
        a(f"v_lshlrev_b32 v62, 16, v{72+q}")
        a(f"v_mul_f32 v61, v61, v62")
        round_bf16(a, 61)
        a(f"v_add_f32 v60, v60, v61")
        a(f"v_and_b32 v61, 0xffff0000, v{64+q}")
        a(f"v_and_b32 v62, 0xffff0000, v{72+q}")
        a(f"v_mul_f32 v61, v61, v62")
        round_bf16(a, 61)
        a(f"v_add_f32 v60, v60, v61")
    a(f"s_mov_b64 exec, s[{sEX}:{sEX+1}]")
    wave_reduce(a, "v_add_f32", 60, 61)
    round_bf16(a, 60)
    a(f"""
    v_mul_f32 v60, {f32bits(-1.4426950408889634)}, v60
    v_exp_f32 v60, v60
    s_nop 0
    v_add_f32 v60, 1.0, v60
    v_rcp_f32 v60, v60
    s_nop 0
    """)
    round_bf16(a, 60)
    a(f"""
    v_mov_b32 v4, 0
    ds_write_b32 v4, v60 offset:{LP_SM}
    s_waitcnt lgkmcnt(0)
    """)
    a.label("p4_nogate")
    a(f"""
    s_cmp_lg_u32 s{sWAVE}, 8
    s_cbranch_scc1 p4_nn
    v_mov_b32 v4, 0
    v_mov_b32 v5, s{sNONCE}
    ds_write_b32 v4, v5 offset:{LP_SM+16}
    s_waitcnt lgkmcnt(0)
    p4_nn:
    v_and_b32 v62, 31, v1
    v_lshlrev_b32 v62, 1, v62
    s_lshl_b32 s{sT1}, s{sJ}, 6
    buffer_load_ushort v63, v62, s[{S_B2}:{S_B2+3}], s{sT1} offen
    """)
    poll(a, 4)
    skip_if_wave_ge(a, 8, "p4_ld_skip")
    a(f"""
    v_mov_b32 v4, 0
    ds_read_b32 v5, v4 offset:{LP_SM+16}
    v_lshrrev_b32 v2, 3, v0
    v_and_b32 v3, 7, v0
    v_mul_u32_u24 v4, 4608, v2
    v_lshl_add_u32 v4, v3, 4, v4
    s_mul_i32 s{sT0}, s{sB}, 2304
    s_lshl_b32 s{sT1}, s{sJ}, 7
    s_add_u32 s{sT0}, s{sT0}, s{sT1}
    """)
    for u in range(2):
        a(f"buffer_load_dwordx4 v[{48+4*u}:{51+4*u}], v4, s[{S_FP}:{S_FP+3}], s{sT0} offen sc1")
        a(f"s_add_u32 s{sT0}, s{sT0}, {64*4608}")
    a(f"""
    v_lshrrev_b32 v6, 4, v0
    v_and_b32 v7, 15, v0
    v_mul_u32_u24 v9, 9216, v6
    v_lshl_add_u32 v9, v7, 4, v9
    s_mul_i32 s{sT0}, s{sB}, 4608
    s_lshl_b32 s{sT1}, s{sJ}, 8
    s_add_u32 s{sT0}, s{sT0}, s{sT1}
    s_add_u32 s{sT0}, s{sT0}, {WS_AP}
    s_mov_b32 s{sCNT}, 0
    s_waitcnt lgkmcnt(0)
    """)
    a.label("e3v_retry")
    a(f"s_mov_b32 s{sT2}, s{sT0}")
    for u in range(4):
        a(f"buffer_load_dwordx4 v[{16+4*u}:{19+4*u}], v9, s[{S_WS}:{S_WS+3}], s{sT2} offen sc1")
        a(f"s_add_u32 s{sT2}, s{sT2}, {32*9216}")
    a("s_waitcnt vmcnt(0)")
    for i in range(8):
        a(f"v_xor_b32 v{17+2*i}, v{17+2*i}, v5")
    a("""
    v_or3_b32 v17, v17, v19, v21
    v_or3_b32 v23, v23, v25, v27
    v_or3_b32 v17, v17, v29, v31
    v_or_b32 v17, v17, v23
    v_cmp_ne_u32 vcc, 0, v17
    """)
    retry_tail(a, "e3v")
    stamp(a, R, "e3")
    a(f"""
    v_add_f32 v16, v16, v20
    v_add_f32 v24, v24, v28
    v_add_f32 v16, v16, v24
    v_add_f32 v18, v18, v22
    v_add_f32 v26, v26, v30
    v_add_f32 v17, v18, v26
    v_add_f32 v48, v48, v52
    v_add_f32 v49, v49, v53
    v_add_f32 v50, v50, v54
    v_add_f32 v51, v51, v55
    s_nop 1
    v_add_f32_dpp v48, v48, v48 row_ror:8 row_mask:0xf bank_mask:0xf
    v_add_f32_dpp v49, v49, v49 row_ror:8 row_mask:0xf bank_mask:0xf
    v_add_f32_dpp v50, v50, v50 row_ror:8 row_mask:0xf bank_mask:0xf
    v_add_f32_dpp v51, v51, v51 row_ror:8 row_mask:0xf bank_mask:0xf
    """)
    regs = [16, 17, 48, 49, 50, 51]
    tmps = [20, 21, 22, 23, 24, 25]
    for op in ("v_permlane16_swap_b32", "v_permlane32_swap_b32"):
        for r, t in zip(regs, tmps):
            a(f"v_mov_b32 v{t}, v{r}")
        a("s_nop 1")
        for r, t in zip(regs, tmps):
            a(f"{op} v{r}, v{t}")
        a("s_nop 1")
        for r, t in zip(regs, tmps):
            a(f"v_add_f32 v{r}, v{r}, v{t}")
    a(f"""
    s_lshl_b32 s{sT2}, s{sWAVE}, 7
    v_lshlrev_b32 v4, 3, v7
    v_add_u32 v4, s{sT2}, v4
    ds_write_b64 v4, v[16:17] offset:40960
    v_lshlrev_b32 v4, 4, v3
    v_add_u32 v4, s{sT2}, v4
    ds_write_b128 v4, v[48:51] offset:49152
    s_waitcnt lgkmcnt(0)
    """)
    a.label("p4_ld_skip")
    a(f"""
    s_barrier
    s_cmp_lg_u32 s{sWAVE}, 0
    s_cbranch_scc1 p4_end
    v_and_b32 v4, 31, v1
    v_lshlrev_b32 v4, 2, v4
    v_mov_b32 v3, 0
    """)
    for g in range(8):
        a(f"ds_read_b32 v{16+g}, v4 offset:{40960+g*128}")
    for g in range(8):
        a(f"ds_read_b32 v{64+g}, v4 offset:{49152+g*128}")
    a(f"""
    ds_read_b32 v60, v3 offset:{LP_SM}
    v_mov_b32 v7, v62
    s_lshl_b32 s{sT1}, s{sJ}, 6
    s_waitcnt lgkmcnt(0)
    """)
    sum_tree(a, range(16, 24))
    sum_tree(a, range(64, 72))
    round_bf16(a, 16)
    a("v_mov_b32 v17, v64")
    round_bf16(a, 17)
    a("""
    v_lshlrev_b32 v8, 16, v63
    v_add_f32 v17, v17, v8
    """)
    round_bf16(a, 17)
    a("v_mul_f32 v16, v60, v16")
    round_bf16(a, 16)
    a("v_sub_f32 v18, 1.0, v60")
    round_bf16(a, 18)
    a("v_mul_f32 v17, v18, v17")
    round_bf16(a, 17)
    a(f"""
    v_add_f32 v16, v16, v17
    v_cvt_pk_bf16_f32 v16, v16, v16
    s_mul_i32 s{sT0}, s{sB}, 1152
    s_add_u32 s{sT0}, s{sT0}, s{sT1}
    v_cmp_gt_u32 vcc, 32, v1
    s_and_saveexec_b64 s[{sEX}:{sEX+1}], vcc
    buffer_store_short v16, v7, s[{S_OUT}:{S_OUT+3}], s{sT0} offen
    s_mov_b64 exec, s[{sEX}:{sEX+1}]
    """)
    a.label("p4_end")
    stamp(a, R, "end")
    stamp_dump(a)


def gen(a):
    name = NAME + "_kernel"
    a.raw(".text")
    a.raw(f".globl {name}")
    a.raw(".p2align 8")
    a.raw(f".type {name},@function")
    a.label(name)
    a(f"""
    s_cmp_ge_u32 s2, 256
    s_cbranch_scc1 k_end
    s_load_dwordx2 s[{S_X}:{S_X+1}], s[0:1], 0
    s_load_dwordx2 s[{S_CKV}:{S_CKV+1}], s[0:1], 8
    s_load_dwordx2 s[{S_WQ}:{S_WQ+1}], s[0:1], 16
    s_load_dwordx2 s[{S_WUK}:{S_WUK+1}], s[0:1], 24
    s_load_dwordx2 s[{S_WUV}:{S_WUV+1}], s[0:1], 32
    s_load_dwordx2 s[{S_WO}:{S_WO+1}], s[0:1], 40
    s_load_dwordx2 s[{S_W1}:{S_W1+1}], s[0:1], 56
    s_load_dwordx2 s[{S_B1}:{S_B1+1}], s[0:1], 64
    s_load_dwordx2 s[{S_W2}:{S_W2+1}], s[0:1], 72
    s_load_dwordx2 s[{S_B2}:{S_B2+1}], s[0:1], 80
    s_load_dwordx2 s[{S_GATE}:{S_GATE+1}], s[0:1], 88
    s_load_dwordx2 s[{S_OUT}:{S_OUT+1}], s[0:1], 96
    s_load_dwordx2 s[{S_DBG}:{S_DBG+1}], s[0:1], 104
    s_load_dwordx2 s[{S_WS}:{S_WS+1}], s[0:1], 112
    s_load_dwordx2 s[{S_FP}:{S_FP+1}], s[0:1], 112
    """)
    srd(a, S_X, 2304); srd(a, S_CKV, 16777216); srd(a, S_WQ, 4718592); srd(a, S_WUK, 4194304)
    srd(a, S_WUV, 4194304); srd(a, S_WO, 4718592); srd(a, S_W1, 5308416); srd(a, S_B1, 9216)
    srd(a, S_W2, 5308416); srd(a, S_B2, 1152); srd(a, S_GATE, 1152); srd(a, S_OUT, 2304)
    srd(a, S_DBG, 256); srd(a, S_WS, 268435456); srd(a, S_FP, 72 * 4608)
    a(f"""
    s_mov_b32 s{sLO}, 0x05040100
    s_mov_b32 s{sHI}, 0x07060302
    v_readfirstlane_b32 s{sWAVE}, v0
    s_lshr_b32 s{sWAVE}, s{sWAVE}, 6
    v_and_b32 v1, 63, v0
    s_waitcnt lgkmcnt(0)
    s_add_u32 s{S_FP}, s{S_FP}, {WS_FFNP}
    s_addc_u32 s{S_FP+1}, s{S_FP+1}, 0
    """)
    stamp(a, "A", "start");
    if STAMP:
        STAMPS["B"].append("start")
    a(f"""
    s_cmp_ge_u32 s2, 128
    s_cbranch_scc1 role_b
    s_lshl_b32 s{sT0}, s{sWAVE}, 8
    s_add_u32 s{sT0}, s{sT0}, s2
    s_cmp_ge_u32 s{sT0}, 8
    s_cbranch_scc1 a_nonw
    s_memrealtime s[{sTS}:{sTS+1}]
    v_mov_b32 v14, 0
    v_mov_b32 v13, 0
    v_cmp_eq_u32 vcc, 0, v1
    s_waitcnt lgkmcnt(0)
    s_or_b32 s{sTS}, s{sTS}, 1
    v_mov_b32 v12, s{sTS}
    s_and_saveexec_b64 s[{sEX}:{sEX+1}], vcc
    buffer_atomic_cmpswap v[12:13], v14, s[{S_DBG}:{S_DBG+3}], 0 offen
    s_mov_b64 exec, s[{sEX}:{sEX+1}]
    a_nonw:
    """)
    role_a(a)
    a.label("role_b")
    role_b(a)
    a.label("k_end")
    a("s_endpgm")
    a.raw('.section .rodata,"a"')
    a.raw(".p2align 6")
    a.raw(f".amdhsa_kernel {name}")
    a.raw("  .amdhsa_next_free_vgpr 168")
    a.raw("  .amdhsa_next_free_sgpr 102")
    a.raw("  .amdhsa_accum_offset 168")
    a.raw("  .amdhsa_group_segment_fixed_size 0")
    a.raw("  .amdhsa_kernarg_size 120")
    a.raw("  .amdhsa_user_sgpr_count 2")
    a.raw("  .amdhsa_user_sgpr_kernarg_segment_ptr 1")
    a.raw("  .amdhsa_system_sgpr_workgroup_id_x 1")
    a.raw(".end_amdhsa_kernel")


def main():
    out = sys.argv[1] if len(sys.argv) > 1 else f"cdna_kernels/{NAME}.s"
    hdr = open(f"cdna_kernels/{NAME}.s.ref").read().split("\n")
    hdr = [l for l in hdr if l.startswith(";") and "@launch" not in l]
    a = A()
    for l in hdr:
        a.raw(l)
    a.raw(f"; @launch grid=(256,1,1) block=(576,1,1) lds={LDS_TOTAL}")
    a.raw('.amdgcn_target "amdgcn-amd-amdhsa--gfx950"')
    gen(a)
    open(out, "w").write(a.text())
    if STAMP:
        print(STAMPS)


main()
```
